```python
import torch

def _softmax(x, axis=-1):
    return torch.softmax(x, dim=axis)
def _gelu(x):
    return torch.nn.functional.gelu(x, approximate="tanh")
def _silu(x):
    return torch.nn.functional.silu(x)
def _sigmoid(x):
    return torch.sigmoid(x)
def _layernorm(x, axis=-1, eps=1e-5):
    m = x.mean(dim=axis, keepdim=True)
    v = x.var(dim=axis, keepdim=True, unbiased=False)
    return (x - m) / torch.sqrt(v + eps)
def _scatter_add(tgt, idx, src, axis=0):
    return tgt.clone().index_add_(axis, idx, src)
def _segment_sum(src, seg, n):
    out = torch.zeros((n,) + src.shape[1:], dtype=src.dtype)
    return out.index_add_(0, seg, src)
def _pad(x, pw):
    flat = tuple(v for pair in reversed(pw) for v in pair)
    return torch.nn.functional.pad(x, flat)

kernel_name = 'concat_heads__mha_block_cached__mha_block_cached__near_ridge'

def setup_inputs():

    _w = (lambda a: (lambda t: t.to(torch.bfloat16) if t.is_floating_point() else t)(torch.as_tensor(a)))
    def _A_setup():
        B, Sq, D = 8, 144, 576
        H, Sk, Dh = 32, 512, 128
        return {
            "x": _w((lambda *s: torch.randn(*s, dtype=torch.bfloat16) * 0.8)(B, Sq, D)),
            "k_cache": _w((lambda *s: torch.randn(*s, dtype=torch.bfloat16) * 0.8)(B, H, Sk, Dh)),
            "v_cache": _w((lambda *s: torch.randn(*s, dtype=torch.bfloat16) * 0.05)(B, H, Sk, Dh)),
            "wq": _w((lambda *s: torch.randn(*s, dtype=torch.bfloat16) * 0.8)(D, H * Dh) * (D ** -0.5)),
            "wo": _w((lambda *s: torch.randn(*s, dtype=torch.bfloat16) * 0.05)(H * Dh, D) * ((H * Dh) ** -0.5)),
        }
    _A_in = _A_setup()

    def _B_setup():
        B, Sq, D = 8, 144, 576
        H, Sk, Dh = 32, 512, 128
        return {
            "x": _w((lambda *s: torch.randn(*s, dtype=torch.bfloat16) * 0.8)(B, Sq, D)),
            "k_cache": _w((lambda *s: torch.randn(*s, dtype=torch.bfloat16) * 0.8)(B, H, Sk, Dh)),
            "v_cache": _w((lambda *s: torch.randn(*s, dtype=torch.bfloat16) * 0.05)(B, H, Sk, Dh)),
            "wq": _w((lambda *s: torch.randn(*s, dtype=torch.bfloat16) * 0.8)(D, H * Dh) * (D ** -0.5)),
            "wo": _w((lambda *s: torch.randn(*s, dtype=torch.bfloat16) * 0.05)(H * Dh, D) * ((H * Dh) ** -0.5)),
        }
    _B_in = _B_setup()

    return {
        "A_x": _A_in["x"],
        "A_k_cache": _A_in["k_cache"],
        "A_v_cache": _A_in["v_cache"],
        "A_wq": _A_in["wq"],
        "A_wo": _A_in["wo"],
        "B_x": _B_in["x"],
        "B_k_cache": _B_in["k_cache"],
        "B_v_cache": _B_in["v_cache"],
        "B_wq": _B_in["wq"],
        "B_wo": _B_in["wo"],
    }

def reference(A_x, A_k_cache, A_v_cache, A_wq, A_wo, B_x, B_k_cache, B_v_cache, B_wq, B_wo):
    def _A_ref(x, k_cache, v_cache, wq, wo):
        B, Sq, D = x.shape
        H, Dh = 32, 128
        q = (lambda x, *d: x.permute(*d))((x @ wq).reshape(B, Sq, H, Dh), 0, 2, 1, 3)
        scores = torch.einsum("bhqd,bhkd->bhqk", q, k_cache) * (Dh ** -0.5)
        p = _softmax(scores, axis=-1)
        o = torch.einsum("bhqk,bhkd->bhqd", p, v_cache)
        return (lambda x, *d: x.permute(*d))(o, 0, 2, 1, 3).reshape(B, Sq, H * Dh) @ wo

    def _B_ref(x, k_cache, v_cache, wq, wo):
        B, Sq, D = x.shape
        H, Dh = 32, 128
        q = (lambda x, *d: x.permute(*d))((x @ wq).reshape(B, Sq, H, Dh), 0, 2, 1, 3)
        scores = torch.einsum("bhqd,bhkd->bhqk", q, k_cache) * (Dh ** -0.5)
        p = _softmax(scores, axis=-1)
        o = torch.einsum("bhqk,bhkd->bhqd", p, v_cache)
        return (lambda x, *d: x.permute(*d))(o, 0, 2, 1, 3).reshape(B, Sq, H * Dh) @ wo

    a = _A_ref(A_x, A_k_cache, A_v_cache, A_wq, A_wo)
    b = _B_ref(B_x, B_k_cache, B_v_cache, B_wq, B_wo)
    return torch.concatenate([a, b], axis=-1)
```

```python
import re

REG = re.compile(r'^(-|abs\()?([vas])(?:(\d+)|\[(\d+):(\d+)\])\)?$')
def regs_of(tok):
    tok = tok.strip()
    if tok in ('vcc', 'exec', 'm0', 'scc'): return [tok]
    if tok in ('vcc_lo', 'vcc_hi'): return ['vcc']
    if tok in ('exec_lo', 'exec_hi'): return ['exec']
    m = REG.match(tok)
    if not m: return []
    k = m.group(2)
    if m.group(3) is not None: return [f"{k}{m.group(3)}"]
    return [f"{k}{i}" for i in range(int(m.group(4)), int(m.group(5)) + 1)]

TRANS = ('v_exp_f32', 'v_log_f32', 'v_rcp_f32', 'v_rsq_f32', 'v_sqrt_f32', 'v_sin_f32', 'v_cos_f32')
class Ins:
    def __init__(self, text):
        self.text = text
        t = text.split(';')[0].strip()
        self.label = t.endswith(':') or t.startswith('.') or t == ''
        self.op = ''; self.dst = []; self.src = []; self.kind = 'none'
        if self.label: return
        parts = t.split(None, 1)
        op = self.op = parts[0]
        ops = []
        if len(parts) > 1:
            rest = parts[1]
            toks = re.split(r',\s*(?![^\[]*\])', rest)
            for tk in toks:
                sub = tk.strip().split()
                ops.append(sub[0] if sub else '')
            self.mods = ' '.join(toks[-1].strip().split()[1:]) if toks else ''
        else:
            self.mods = ''
        R = [regs_of(o) for o in ops]
        flat = lambda L: [r for x in L for r in x]
        if op.startswith('v_mfma'):
            self.kind = 'mfma'; self.dst = R[0]; self.src = flat(R[1:]); self.A = R[1]; self.B = R[2]; self.C = R[3]
            self.passes = 8 if '32x32' in op else 4
        elif op.startswith('ds_read') or op.startswith('ds_bpermute') or op.startswith('ds_swizzle'):
            self.kind = 'ds'; self.dst = R[0]; self.src = flat(R[1:])
        elif op.startswith('ds_'):
            self.kind = 'ds'; self.src = flat(R)
        elif op.startswith('buffer_load') or op.startswith('global_load'):
            self.kind = 'vmem'
            if ' lds' in ' ' + self.mods or '_lds_' in op:
                self.src = flat(R) + ['m0']; self.dma = True
            else:
                self.dst = R[0]; self.src = flat(R[1:])
        elif op.startswith('buffer_store') or op.startswith('global_store'):
            self.kind = 'vmem'; self.src = flat(R); self.store = True
            self.data = R[0] if op.startswith('buffer') else R[1]
        elif op.startswith('buffer_atomic') or op.startswith('global_atomic'):
            self.kind = 'vmem'; self.src = flat(R)
            if 'sc0' in self.mods: self.dst = R[0]
        elif op.startswith('buffer_') :
            self.kind = 'vmem'
        elif op.startswith('v_'):
            self.kind = 'valu'
            self.dst = list(R[0]); self.src = flat(R[1:])
            if op.startswith('v_permlane') or op.startswith('v_swap'):
                self.dst = R[0] + R[1]; self.src = R[0] + R[1]
            if op.startswith('v_fmac') or op.startswith('v_writelane'): self.src += R[0]
            if op.startswith('v_cmpx'): self.dst += ['exec']
            if '_co_' in op: self.dst += R[1]; self.src = flat(R[2:])
            if op.startswith('v_cndmask') and len(R) == 3: self.src += ['vcc']
        elif op.startswith('s_'):
            self.kind = 'salu'
            if op.startswith('s_load') or op.startswith('s_memtime') or op.startswith('s_memrealtime') or op.startswith('s_buffer_load'):
                self.kind = 'smem'; self.dst = R[0]; self.src = flat(R[1:])
            elif op.startswith(('s_cmp', 's_cbranch', 's_branch', 's_waitcnt', 's_barrier', 's_nop', 's_endpgm', 's_sleep', 's_setprio', 's_bitcmp')):
                self.src = flat(R)
            else:
                self.dst = list(R[0]) if R else []; self.src = flat(R[1:])
                if 'saveexec' in op: self.dst += ['exec']; self.src += ['exec']
        self.trans = op.replace('_e32', '').replace('_e64', '') in TRANS
    def states(self):
        if self.label: return 0
        if self.op == 's_nop': return int(self.text.split(';')[0].split()[1], 0) + 1
        return 1

def check_hazards(lines, verbose=True):
    ins = [Ins(l) for l in lines]
    probs = []
    n = len(ins)
    for i, p in enumerate(ins):
        if p.label: continue
        dist = 0
        for j in range(i + 1, n):
            c = ins[j]
            if c.label: continue
            need = 0
            pd = set(p.dst);
            cs = set(c.src); cd = set(c.dst)
            if p.kind == 'valu':
                vd = {r for r in pd if r[0] in 'va' and r not in ('vcc',)}
                sd = {r for r in pd if r[0] == 's' or r == 'vcc'}
                if c.kind == 'mfma' and vd & cs: need = max(need, 2)
                if c.op.startswith('v_permlane') and vd & cs: need = max(need, 2)
                if c.op.startswith(('v_readfirstlane', 'v_readlane')) and vd & cs: need = max(need, 1)
                if p.trans and c.kind in ('valu',) and not c.trans and vd & cs: need = max(need, 1)
                if p.trans and c.kind in ('mfma',) and vd & cs: need = max(need, 2)
                if c.kind == 'vmem' and sd & cs: need = max(need, 5)
                if c.kind == 'valu' and sd & cs: need = max(need, 2)
                if c.kind == 'salu' and sd & cs: need = max(need, 1)
                if 'exec' in pd and c.kind == 'mfma': need = max(need, 4)
                if 'dpp' in c.text and vd & cs: need = max(need, 2)
            if p.kind == 'mfma':
                big, mid, war = (12, 10, 7) if p.passes == 8 else (8, 6, 3)
                if c.kind == 'mfma':
                    if pd & (set(c.A) | set(c.B)): need = max(need, big)
                    if pd & set(c.C):
                        if not (c.C == p.dst and c.passes == p.passes): need = max(need, mid)
                    elif pd & cd and not (c.dst == p.dst and c.passes == p.passes): need = max(need, mid)
                elif c.kind in ('valu', 'ds', 'vmem'):
                    if pd & (cs | cd): need = max(need, big)
                    if c.kind == 'valu' and set(p.C) & cd: need = max(need, war)
            if p.kind == 'salu' and 'm0' in pd and getattr(c, 'dma', False): need = max(need, 1)
            if getattr(p, 'store', False) and len(p.data) >= 3 and set(p.data) & cd: need = max(need, 2 if c.kind == 'valu' else 1)
            if p.kind == 'ds' and p.op.startswith('ds_write') and c.kind == 'valu' and False: pass
            if need > dist:
                probs.append((i, j, need, dist, p.text, c.text))
            dist += c.states()
            if dist >= 20: break
    if verbose:
        for pr in probs: print("HAZARD need %d have %d:\n   %s\n   %s" % (pr[2], pr[3], pr[4].strip(), pr[5].strip()))
    return probs

def auto_lgkm(lines, group=2, maxcnt=15):
    ins = [Ins(l) for l in lines]
    out = []
    pend = []
    def need_n(c):
        touch = set(c.src) | set(c.dst)
        last = -1
        for k, d in enumerate(pend):
            if d & touch: last = k
        return last
    i = 0
    for i, c in enumerate(ins):
        if c.label:
            out.append(c.text); continue
        if c.op == 's_waitcnt':
            m = re.search(r'lgkmcnt\((\d+)\)', c.text)
            if m:
                N = int(m.group(1))
                if len(pend) > N: pend = pend[len(pend) - N:] if N else []
            out.append(c.text); continue
        last = need_n(c)
        if last >= 0:
            if c.kind == 'mfma' and group > 1:
                seen = 1
                for j in range(i + 1, len(ins)):
                    d = ins[j]
                    if d.label or d.op in ('s_barrier',) or d.op.startswith(('s_cbranch', 's_branch')): break
                    if d.kind == 'mfma':
                        l2 = need_n(d)
                        if l2 > last: last = l2
                        seen += 1
                        if seen >= group: break
            N = len(pend) - 1 - last
            assert N <= maxcnt, ("lgkmcnt overflow", N, c.text)
            out.append(f"    s_waitcnt lgkmcnt({N})")
            pend = pend[last + 1:]
        if c.kind == 'ds':
            pend.append(set(c.dst))
        elif c.kind == 'smem':
            pend.append(set(c.dst))
        if len(pend) > maxcnt + 1:
            pass
        out.append(c.text)
    return out

class Prog:
    def __init__(self): self.L = []
    def __call__(self, s):
        for l in s.split('\n'):
            if l.strip(): self.L.append('    ' + l.strip() if not l.strip().endswith(':') else l.strip())
    def ext(self, L):
        for l in L: self(l)

def weave(mf, gaps_ds, gaps_misc, valu, budget=None):
    out = []
    q = list(valu)
    n = len(mf)
    def cost(t):
        t = t.strip()
        if t.split()[0] in TRANS: return 2
        if t.startswith('s_nop'): return int(t.split()[1]) + 1
        return 1
    carry = 0.0
    for i, m in enumerate(mf):
        out.append(m)
        cap = 6 if '32x32' in m else 2
        if budget: cap = budget(i, cap)
        used = 0
        for t in gaps_ds.get(i, []) + gaps_misc.get(i, []):
            out.append(t); used += cost(t)
        used += 0.5
        while q and q[0][1] <= i:
            c = cost(q[0][0])
            must = any(it[2] <= i for it in q)
            if used + c <= cap + carry or must:
                out.append(q.pop(0)[0]); used += c
            else: break
        carry = min(max(cap + carry - used, -1.0), 0.5)
    assert not q, ("valu left over", q[:3])
    return out
```

```python
import sys
from asmlib import *

NAME = "concat_heads__mha_block_cached__mha_block_cached__near_ridge"
KV_FLAGS = "nt"
W_FLAGS = ""
OST_FLAGS = ""
for a in sys.argv[1:]:
    if a.startswith("kv="): KV_FLAGS = a[3:].replace("+", " ")
    if a.startswith("w="): W_FLAGS = a[2:].replace("+", " ")
    if a.startswith("ost="): OST_FLAGS = a[4:].replace("+", " ")
STAMP = "stamp" in sys.argv

def vr(b, n=1): return f"v{b}" if n == 1 else f"v[{b}:{b+n-1}]"
def ar(b, n=1): return f"a{b}" if n == 1 else f"a[{b}:{b+n-1}]"
K = 1024
OBLK = 36 * 256 * 1024

sX, sK, sV, sWQ, sWS = "s[8:11]", "s[12:15]", "s[16:19]", "s[20:23]", "s[24:27]"
sW, sW4096, sXm0, sPair, sKoff, sVoff = "s28", "s29", "s30", "s31", "s32", "s33"
sWQoff, sXoff, sStage, sH, sB, sBlk = "s34", "s35", "s36", "s37", "s38", "s39"
sXbase, sWQbase, sOoff, sO8off, sRetry, sIter, sScale, sStage0 = "s40", "s41", "s42", "s43", "s44", "s45", "s46", "s47"
sOoff2 = "s48"
O = 0
S = 64
P = 96
POOL = 112
S8 = 144
P8 = 152
NEGM = 156
NEGM8 = 172
L = 176; L8 = 177
T = 178
aK = 186
aK8 = 194
aV = 198
aV8 = 202
aWQ = 210
aX = 214
aX8 = 218
dK = 222
dV = 226
dWQ = 228
dX = 232
vLin = 237
vO8 = 238
vQ8w = 239
vMrg = 240
vL8w = 241
vL8r = 242
vLane = 243
NV1 = 248
aQ = 0
aQ8 = 32
aO8 = 48
NA1 = 80
XSLOT = [64*K, 44*K, 84*K]; XBASE = 44*K
WSLOT = [128*K, 144*K, 112*K]; WBASE = 112*K
Q8BUF = 128*K
L8BUF = 32*K

def q_dma(slot):
    g = []
    g.append([f"s_mul_i32 {sWQoff}, {sStage}, {64*8192}", f"s_add_u32 {sWQoff}, {sWQoff}, {sWQbase}"])
    g.append([f"s_lshl_b32 {sXoff}, {sStage}, 7", f"s_add_u32 {sXoff}, {sXoff}, {sXbase}"])
    g.append([f"s_add_u32 m0, {sW4096}, {WSLOT[slot]}", f"s_add_u32 {sStage}, {sStage}, 1",
              f"buffer_load_dwordx4 {vr(dWQ)}, {sWQ}, {sWQoff} offen {W_FLAGS} lds"])
    for i in range(1, 4):
        g.append([f"buffer_load_dwordx4 {vr(dWQ+i)}, {sWQ}, {sWQoff} offen offset:{i*1024} {W_FLAGS} lds"])
    g.append([f"s_add_u32 m0, {sXm0}, {XSLOT[slot]}", f"s_cmp_eq_u32 {sStage}, 9",
              f"buffer_load_dwordx4 {vr(dX)}, {sX}, {sXoff} offen {W_FLAGS} lds"])
    g.append([f"s_cselect_b32 {sStage}, 0, {sStage}",
              f"buffer_load_dwordx4 {vr(dX+1)}, {sX}, {sXoff} offen offset:1024 {W_FLAGS} lds"])
    for i in range(2, 4):
        g.append([f"buffer_load_dwordx4 {vr(dX+i)}, {sX}, {sXoff} offen offset:{i*1024} {W_FLAGS} lds"])
    g.append([f"s_add_u32 m0, {sXm0}, {XSLOT[slot] + 4096}", "s_nop 0",
              f"buffer_load_dwordx4 {vr(dX+4)}, {sX}, {sXoff} offen {W_FLAGS} lds"])
    return g

def u_dma(e):
    g = []
    if e <= 7:
        g.append([f"s_add_u32 m0, {sW4096}, {(e % 4) * 16384}", "s_nop 0",
                  f"buffer_load_dwordx4 {vr(dK)}, {sK}, {sKoff} offen {KV_FLAGS} lds"])
        for i in range(1, 4):
            g.append([f"buffer_load_dwordx4 {vr(dK+i)}, {sK}, {sKoff} offen offset:{i*1024} {KV_FLAGS} lds"])
        g[-1].append(f"s_add_u32 {sKoff}, {sKoff}, 16384")
    if e >= 1:
        g.append([f"s_add_u32 m0, {sW4096}, {65536 + ((e-1) % 4) * 16384}", "s_nop 0",
                  f"buffer_load_dwordx4 {vr(dV)}, {sV}, {sVoff} offen {KV_FLAGS} lds"])
        for i in range(1, 4):
            g.append([f"buffer_load_dwordx4 {vr(dV+(i&1))}, {sV}, {sVoff} offen offset:{i*1024} {KV_FLAGS} lds"])
        g[-1].append(f"s_add_u32 {sVoff}, {sVoff}, 16384")
    return g

def spread(groups, gaps, misc):
    n = len(groups)
    for k, grp in enumerate(groups):
        gi = gaps[(k * len(gaps)) // n]
        misc.setdefault(gi, []).extend(grp)

def q_phase(p):
    QF = [P, P + 24]
    def reads(i, s):
        f = QF[(4*i + s) & 1]
        xo = XSLOT[i % 3] - XBASE
        wo = WSLOT[i % 3] - WBASE + s * 4096
        r = [f"ds_read_b128 {vr(f,4)}, {vr(aX+s)} offset:{xo}"]
        def w(dl): return [f"ds_read_b64_tr_b16 {vr(f+8+4*dl+2*u,2)}, {vr(aWQ+dl)} offset:{wo+u*1024}" for u in range(2)]
        r += w(0)
        r += [f"ds_read_b128 {vr(f+4,4)}, {vr(aX8+s)} offset:{xo}"]
        r += w(1) + w(2) + w(3)
        return r
    p("s_waitcnt vmcnt(9)")
    p("s_barrier")
    p.ext(reads(0, 0))
    mf = []; ds = {}; misc = {}
    for i in range(9):
        base = len(mf)
        for s in range(4):
            f = QF[(4*i + s) & 1]
            first = (i == 0 and s == 0)
            def mm(acc, a, b):
                c = "0" if first else vr(acc, 16)
                mf.append(f"v_mfma_f32_32x32x16_bf16 {vr(acc,16)}, {vr(a,4)}, {vr(b,4)}, {c}")
            g0 = len(mf)
            mm(O, f+8, f); mm(S, f+8, f+4); mm(O+16, f+12, f); mm(O+32, f+16, f); mm(O+48, f+20, f)
            if s < 3:
                r = reads(i, s+1); st = g0
            elif i < 8:
                r = reads(i+1, 0); st = g0 + 1
                cnt = 9 if i + 1 <= 7 else 4
                ds.setdefault(st, []).extend([f"s_waitcnt vmcnt({cnt}) lgkmcnt(0)", "s_barrier"])
            else:
                r = []
            for k, (a, b) in enumerate(((0,3),(3,6),(6,8),(8,10))):
                ds.setdefault(st + k, []).extend(r[a:b])
        gaps = list(range(base, base + 15))
        if i <= 6: spread(q_dma((i + 2) % 3), gaps, misc)
        elif i == 7: spread(u_dma(0), gaps, misc)
        else: spread(u_dma(1), gaps, misc)
    p.ext(weave(mf, ds, misc, []))
    p("s_nop 7")
    for j in range(0, 16, 2):
        p(f"v_pk_mul_f32 {vr(S+j,2)}, {vr(S+j,2)}, s[{sScale[1:]}:{int(sScale[1:])+1}] op_sel_hi:[1,0]")
    for j in range(8):
        p(f"v_cvt_pk_bf16_f32 {vr(S+16+j)}, {vr(S+2*j)}, {vr(S+2*j+1)}")
    p("s_mov_b32 exec_lo, 0xffff")
    p("s_mov_b32 exec_hi, 0xffff")
    p(f"ds_write_b128 {vr(vQ8w)}, {vr(S+16,4)}")
    p(f"ds_write_b128 {vr(vQ8w)}, {vr(S+20,4)} offset:512")
    p("s_mov_b64 exec, -1")
    for j in range(0, 64, 2):
        p(f"v_pk_mul_f32 {vr(O+j,2)}, {vr(O+j,2)}, s[{sScale[1:]}:{int(sScale[1:])+1}] op_sel_hi:[1,0]")
    for j in range(32):
        p(f"v_cvt_pk_bf16_f32 {vr(O+j)}, {vr(O+2*j)}, {vr(O+2*j+1)}")
    for j in range(32):
        p(f"v_accvgpr_write_b32 {ar(aQ+j)}, {vr(O+j)}")
    p("s_waitcnt vmcnt(8) lgkmcnt(0)")
    p("s_barrier")
    for s in range(4):
        p(f"ds_read_b128 {ar(aQ8+4*s,4)}, {vr(vLin)} offset:{s*1024}")

def a_phase(p):
    LA = 5
    mf = []; frag = []; stepstart = {}; valu = []
    ds = {}; misc = {}
    def add(text_fn, reads_fn):
        i = len(mf)
        f = POOL + 4 * (i % 8)
        mf.append(text_fn(f)); frag.append(reads_fn(f))
    def qk(t, sl):
        sb = S + 16 * (t & 1)
        c = vr(NEGM, 16) if sl == 0 else vr(sb, 16)
        off = ((t >> 1) % 4) * 16384 + (t & 1) * 8192
        add(lambda f: f"v_mfma_f32_32x32x16_bf16 {vr(sb,16)}, {vr(f,4)}, {ar(aQ+4*sl,4)}, {c}",
            lambda f: [f"ds_read_b128 {vr(f,4)}, {vr(aK+sl)} offset:{off}"])
    def pv(t, k):
        tp, D = k >> 2, k & 3
        c = "0" if (t == 0 and tp == 0) else vr(O + 16*D, 16)
        off = ((t >> 1) % 4) * 16384 + (t & 1) * 8192 + tp * 4096
        add(lambda f: f"v_mfma_f32_32x32x16_bf16 {vr(O+16*D,16)}, {vr(f,4)}, {vr(P+8*(t&1)+4*tp,4)}, {c}",
            lambda f: [f"ds_read_b64_tr_b16 {vr(f+2*u,2)}, {vr(aV+D)} offset:{off+u*2048}" for u in range(2)])
    def qk8(m, k):
        kt, sp = k >> 2, k & 3
        c = vr(NEGM8, 4) if sp == 0 else vr(S8 + 4*kt, 4)
        off = (m & 1) * 32768 + kt * 4096
        add(lambda f: f"v_mfma_f32_16x16x32_bf16 {vr(S8+4*kt,4)}, {vr(f,4)}, {ar(aQ8+4*sp,4)}, {c}",
            lambda f: [f"ds_read_b128 {vr(f,4)}, {vr(aK8+sp)} offset:{off}"])
    def pv8(m, D):
        c = "0" if m == 0 else ar(aO8 + 4*D, 4)
        off = (m & 1) * 32768
        add(lambda f: f"v_mfma_f32_16x16x32_bf16 {ar(aO8+4*D,4)}, {vr(f,4)}, {vr(P8,4)}, {c}",
            lambda f: [f"ds_read_b64_tr_b16 {vr(f+2*u,2)}, {vr(aV8+D)} offset:{off+u*4096}" for u in range(2)])
    marks = {}
    for u in range(-1, 17):
        stepstart[u] = len(mf)
        seq = []
        for k in range(8):
            if 0 <= u + 1 <= 15: seq.append((qk, u + 1, k))
            if 0 <= u - 1 <= 15: seq.append((pv, u - 1, k))
        ex = []
        if u >= 1 and u % 4 == 1 and u <= 13: ex = [(qk8, u // 4, k) for k in range(8)]
        if u >= 4 and u % 4 == 0: ex = [(pv8, u // 4 - 1, k) for k in range(8)]
        merged = []
        for k, it in enumerate(seq):
            merged.append(it)
            if ex and k >= 1: merged.append(ex.pop(0))
        merged += ex
        for fn, a, b in merged:
            if fn is qk8 and b == 7: marks[('qk8end', a)] = len(mf)
            if fn is pv8 and b == 0: marks[('pv8start', a)] = len(mf)
            fn(a, b)
    stepstart[17] = len(mf)
    n = len(mf)
    bar = {}
    for e in range(1, 9):
        g = stepstart[2*e - 1] - LA
        bar[e] = g
        cnt = 8 if e <= 6 else (4 if e == 7 else 9)
        ds.setdefault(g, []).extend([f"s_waitcnt vmcnt({cnt})", "s_barrier"])
    bar[0] = -1; bar[9] = n - 4
    pre = []
    for i in range(n):
        if i - LA < 0: pre += frag[i]
        else: ds.setdefault(i - LA, []).extend(frag[i])
    for e in range(0, 9):
        gaps = list(range(bar[e] + 1, bar[e+1]))
        if e <= 6: spread(u_dma(e + 2), gaps, misc)
        else: spread(q_dma(e - 7), gaps, misc)
    def sm(t):
        sb = S + 16 * (t & 1); pb = P + 8 * (t & 1)
        o = []
        for j in range(0, 16, 2):
            o += [f"v_exp_f32 {vr(sb+j)}, {vr(sb+j)}", f"v_exp_f32 {vr(sb+j+1)}, {vr(sb+j+1)}"]
            if j >= 2:
                o += [f"v_add_f32 {vr(L)}, {vr(L)}, {vr(sb+j-2)}", f"v_cvt_pk_bf16_f32 {vr(pb+j//2-1)}, {vr(sb+j-2)}, {vr(sb+j-1)}",
                      f"v_add_f32 {vr(L)}, {vr(L)}, {vr(sb+j-1)}"]
        o += [f"v_add_f32 {vr(L)}, {vr(L)}, {vr(sb+14)}", f"v_cvt_pk_bf16_f32 {vr(pb+7)}, {vr(sb+14)}, {vr(sb+15)}",
              f"v_add_f32 {vr(L)}, {vr(L)}, {vr(sb+15)}"]
        return o
    def sm8():
        o = []
        for j in range(0, 8, 2):
            o += [f"v_exp_f32 {vr(S8+j)}, {vr(S8+j)}", f"v_exp_f32 {vr(S8+j+1)}, {vr(S8+j+1)}"]
            if j >= 2:
                o += [f"v_add_f32 {vr(L8)}, {vr(L8)}, {vr(S8+j-2)}", f"v_cvt_pk_bf16_f32 {vr(P8+j//2-1)}, {vr(S8+j-2)}, {vr(S8+j-1)}",
                      f"v_add_f32 {vr(L8)}, {vr(L8)}, {vr(S8+j-1)}"]
        o += [f"v_add_f32 {vr(L8)}, {vr(L8)}, {vr(S8+6)}", f"v_cvt_pk_bf16_f32 {vr(P8+3)}, {vr(S8+6)}, {vr(S8+7)}",
              f"v_add_f32 {vr(L8)}, {vr(L8)}, {vr(S8+7)}"]
        return o
    for u in range(0, 16):
        lo = stepstart[u] + (2 if u == 0 else 1); hi = stepstart[u+1] - 1
        main = [(t, lo, hi) for t in sm(u)]
        extra = []
        if u % 4 == 2: extra = sm8()[:10]
        if u % 4 == 3: extra = sm8()[10:]
        outq = []
        for k, it in enumerate(main):
            outq.append(it)
            if extra and k % 4 == 3: outq.append((extra.pop(0), lo, hi))
        outq += [(t, lo, hi) for t in extra]
        valu += outq
    p(f"v_mov_b32 {vr(L)}, 0")
    p(f"v_mov_b32 {vr(L8)}, 0")
    p.ext(pre)
    p.ext(weave(mf, ds, misc, valu))

def stamp(p, k):
    if not STAMP: return
    p(f"s_memrealtime s[{60+2*k}:{61+2*k}]")

def k1():
    p = Prog()
    p(f"""s_cmp_ge_u32 s2, 256
    s_cbranch_scc1 K1_END
    s_load_dwordx8 s[52:59], s[0:1], 0
    s_load_dwordx8 s[60:67], s[0:1], 40
    s_load_dwordx2 s[24:25], s[0:1], 96
    v_and_b32 {vr(vLane)}, 63, v0
    v_lshrrev_b32 v1, 6, v0
    s_and_b32 s3, s2, 7
    v_readfirstlane_b32 {sW}, v1
    s_lshr_b32 s4, s2, 3
    s_lshr_b32 {sBlk}, s3, 2
    s_and_b32 {sB}, s4, 7
    s_lshr_b32 s5, s4, 3
    s_and_b32 s3, s3, 3
    s_lshl_b32 s3, s3, 2
    s_add_u32 s3, s3, s5
    s_lshl_b32 {sH}, s3, 1
    s_lshl_b32 s5, s5, 1
    s_add_u32 {sStage0}, s5, {sB}
    s_cmp_ge_u32 {sStage0}, 9
    s_cselect_b32 s5, 9, 0
    s_sub_u32 {sStage0}, {sStage0}, s5
    s_mov_b32 {sStage}, {sStage0}
    s_lshl_b32 {sW4096}, {sW}, 12
    s_mul_i32 {sXm0}, {sW}, 5120
    s_mul_i32 {sXbase}, {sB}, 165888
    s_lshl_b32 {sWQbase}, {sH}, 8
    s_mov_b32 s10, 1327104
    s_mov_b32 s11, 0x20000
    s_mov_b32 s14, 33554432
    s_mov_b32 s15, 0x20000
    s_mov_b32 s18, 33554432
    s_mov_b32 s19, 0x20000
    s_mov_b32 s22, 4718592
    s_mov_b32 s23, 0x20000
    s_mov_b32 s26, {2*OBLK}
    s_mov_b32 s27, 0x20000""")
    ln = vr(vLane)
    t0, t1, t2, t3, t4, t5 = [vr(T+i) for i in range(6)]
    l16, l4, r32, hh, cc, rr = vr(1), vr(2), vr(3), vr(4), vr(5), vr(6)
    g1, l7, l3 = vr(7), vr(8), vr(9)
    p(f"""v_and_b32 {l16}, 15, {ln}
    v_lshrrev_b32 {l4}, 4, {ln}
    v_and_b32 {l7}, 7, {ln}
    v_lshrrev_b32 {l3}, 3, {ln}""")
    p(f"""v_lshlrev_b32 {t0}, 2, {l4}
    v_xor_b32 {t0}, {t0}, {l16}
    v_lshlrev_b32 {t0}, 4, {t0}
    s_lshl_b32 s3, {sW}, 4
    v_add_u32 {t1}, s3, {l4}
    v_lshl_add_u32 {vr(dWQ)}, {t1}, 13, {t0}""")
    for i in range(1, 4): p(f"v_add_u32 {vr(dWQ+i)}, {i*(32768-1024)}, {vr(dWQ)}")
    p(f"s_mul_i32 s3, {sW}, 5")
    for i in range(5):
        p(f"""s_add_u32 s4, s3, {i}
        s_lshl_b32 s5, s4, 2
        s_mul_i32 s4, s4, 9216
        v_add_u32 {t0}, s5, {l4}
        v_and_b32 {t0}, 7, {t0}
        v_xor_b32 {t0}, {t0}, {l7}
        v_lshlrev_b32 {t0}, 4, {t0}
        v_mul_u32_u24 {t1}, 1152, {l3}
        s_sub_u32 s4, s4, {i*1024 if i < 4 else 0}
        v_add3_u32 {vr(dX+i)}, {t0}, {t1}, s4""")
    p(f"""s_waitcnt lgkmcnt(0)
    s_cmp_eq_u32 {sBlk}, 0
    s_cselect_b64 s[8:9], s[52:53], s[60:61]
    s_cselect_b64 s[12:13], s[54:55], s[62:63]
    s_cselect_b64 s[16:17], s[56:57], s[64:65]
    s_cselect_b64 s[20:21], s[58:59], s[66:67]""")
    stamp(p, 0)
    for g in q_dma(0) + q_dma(1): p.ext(g)
    p(f"""v_and_b32 {r32}, 31, {ln}
    v_lshrrev_b32 {hh}, 5, {ln}
    v_and_b32 {cc}, 3, {ln}
    v_bfe_u32 {rr}, {ln}, 2, 2
    v_and_b32 {g1}, 1, {l4}
    v_lshlrev_b32 {vr(vLin)}, 4, {ln}""")
    for i in range(4):
        p(f"""v_add_u32 {t0}, {4*i}, {l4}
        v_xor_b32 {t0}, {t0}, {l16}
        v_lshlrev_b32 {t0}, 4, {t0}
        v_lshl_add_u32 {t0}, {l4}, 8, {t0}
        v_add_u32 {vr(dK+i)}, {sW4096}, {t0}""")
    p(f"""v_lshlrev_b32 {t0}, 2, {l4}
    v_xor_b32 {t0}, {t0}, {l16}
    v_lshlrev_b32 {t0}, 4, {t0}
    v_lshl_add_u32 {t0}, {l4}, 8, {t0}
    v_add_u32 {vr(dV)}, {sW4096}, {t0}
    v_xor_b32 {vr(dV+1)}, 32, {vr(dV)}""")
    p(f"""v_and_b32 {t0}, 1, {cc}
    v_lshl_add_u32 {t0}, {g1}, 1, {t0}
    v_lshlrev_b32 {t0}, 4, {t0}
    v_lshrrev_b32 {t1}, 1, {cc}
    v_lshl_add_u32 {t2}, {t1}, 3, {t0}""")
    p(f"""v_lshl_add_u32 {t0}, {hh}, 3, {rr}
    v_lshl_add_u32 {t3}, {t0}, 8, {t2}
    v_add_u32 {t3}, {WBASE}, {t3}""")
    for dl in range(4):
        p(f"""s_add_u32 s3, {sW}, {dl}
        s_and_b32 s3, s3, 3
        v_xor_b32 {t0}, s3, {rr}
        v_lshl_add_u32 {vr(aWQ+dl)}, {t0}, 6, {t3}""")
    p(f"""v_lshlrev_b32 {t0}, 5, {hh}
    v_xor_b32 {t2}, {t2}, {t0}
    v_lshl_add_u32 {t0}, {hh}, 2, {rr}
    v_lshl_add_u32 {t3}, {t0}, 8, {t2}
    v_add_u32 {t3}, 65536, {t3}""")
    for D in range(4):
        p(f"""v_xor_b32 {t0}, {D}, {rr}
        v_lshl_add_u32 {vr(aV+D)}, {t0}, 6, {t3}""")
    p(f"""v_bfe_u32 {t1}, {r32}, 1, 3
    v_lshlrev_b32 {t3}, 7, {r32}
    v_add_u32 {t3}, {XBASE}, {t3}""")
    for s in range(4):
        p(f"""v_add_u32 {t0}, {2*s}, {hh}
        v_xor_b32 {t0}, {t0}, {t1}
        v_lshl_add_u32 {t0}, {t0}, 4, {t3}
        v_add_u32 {vr(aX+s)}, {sW4096}, {t0}
        v_add_u32 {vr(aX8+s)}, {128*128}, {t0}""")
    p(f"v_lshlrev_b32 {t3}, 8, {r32}")
    for sl in range(8):
        p(f"""s_lshl_b32 s3, {sW}, 1
        s_add_u32 s3, s3, {sl}
        s_and_b32 s3, s3, 7
        s_lshl_b32 s3, s3, 1
        v_add_u32 {t0}, s3, {hh}
        v_xor_b32 {t0}, {t0}, {l16}
        v_lshl_add_u32 {vr(aK+sl)}, {t0}, 4, {t3}""")
    p(f"""s_lshl_b32 s3, {sW}, 13
    v_lshlrev_b32 {t3}, 8, {l16}
    v_add_u32 {t3}, s3, {t3}""")
    for sp in range(4):
        p(f"""v_add_u32 {t0}, {4*sp}, {l4}
        v_xor_b32 {t0}, {t0}, {l16}
        v_lshl_add_u32 {vr(aK8+sp)}, {t0}, 4, {t3}""")
    p(f"""v_lshl_add_u32 {t0}, {l4}, 2, {rr}
    v_and_b32 {t1}, 1, {cc}
    v_lshlrev_b32 {t1}, 3, {t1}
    v_lshl_add_u32 {t3}, {t0}, 8, {t1}
    s_add_u32 s3, s3, 65536
    v_add_u32 {t3}, s3, {t3}
    v_lshlrev_b32 {t0}, 2, {rr}
    v_lshl_add_u32 {t0}, {g1}, 1, {t0}
    v_lshrrev_b32 {t1}, 1, {cc}
    v_xor_b32 {t2}, {t0}, {t1}""")
    for D in range(8):
        p(f"""v_xor_b32 {t0}, {2*D}, {t2}
        v_lshl_add_u32 {vr(aV8+D)}, {t0}, 4, {t3}""")
    p(f"""v_lshl_add_u32 {t0}, {hh}, 4, {r32}
    s_lshl_b32 s3, {sW}, 10
    s_add_u32 s3, s3, {Q8BUF}
    v_lshl_add_u32 {vr(vQ8w)}, {t0}, 4, s3
    s_and_b32 s4, {sB}, 1
    s_lshl_b32 s4, s4, 4
    v_lshl_add_u32 {t0}, {g1}, 5, {l16}
    v_add_u32 {t0}, s4, {t0}
    v_lshlrev_b32 {t0}, 4, {t0}
    v_lshl_add_u32 {vr(vO8)}, {hh}, 10, {t0}
    v_lshlrev_b32 {t0}, 4, {l16}
    v_lshl_add_u32 {t1}, {g1}, 9, {t0}
    v_lshl_add_u32 {t1}, {hh}, 10, {t1}
    s_lshl_b32 s3, {sW}, 11
    v_add_u32 {vr(vMrg)}, s3, {t1}
    v_add_u32 {vr(vL8r)}, {L8BUF}, {t0}
    s_lshl_b32 s3, {sW}, 2
    v_add_u32 {vr(vL8w)}, s3, {vr(vL8r)}""")
    p(f"""s_lshl_b32 s3, {sB}, 5
    s_add_u32 s3, s3, {sH}
    s_lshl_b32 {sPair}, s3, 17
    s_lshr_b32 s3, {sB}, 1
    s_mul_i32 s3, s3, 9
    s_and_b32 s4, {sB}, 1
    s_lshl_b32 s4, s4, 2
    s_add_u32 s4, s4, s3
    s_add_u32 s4, s4, {sW}
    s_add_u32 s3, s3, 8
    s_lshl_b32 s4, s4, 18
    s_lshl_b32 s3, s3, 18
    s_mul_i32 s5, {sBlk}, {OBLK}
    s_lshl_b32 s6, {sH}, 13
    s_add_u32 s5, s5, s6
    s_add_u32 {sOoff}, s5, s4
    s_add_u32 {sO8off}, s5, s3
    s_lshl_b32 s3, {sW}, 11
    s_add_u32 {sO8off}, {sO8off}, s3
    s_mov_b32 {sScale}, 0x3e0293ee
    s_mov_b32 {sIter}, 0""")
    p("K1_HEAD:")
    for j in range(16): p(f"v_mov_b32 {vr(NEGM+j)}, 0")
    for j in range(4): p(f"v_mov_b32 {vr(NEGM8+j)}, 0")
    p(f"""s_mov_b32 {sRetry}, 0
    s_mov_b32 {sKoff}, {sPair}
    s_mov_b32 {sVoff}, {sPair}
    v_add_u32 {vr(vLin)}, {Q8BUF}, {vr(vLin)}""")
    q_phase(p)
    p(f"""v_subrev_u32 {vr(vLin)}, {Q8BUF}, {vr(vLin)}
    s_add_u32 {sWQbase}, {sWQbase}, 256
    s_cmp_eq_u32 {sIter}, 0
    s_cselect_b32 s10, s10, 0
    s_cselect_b32 s22, s22, 0""")
    if STAMP: p(f"s_memrealtime s[64:65]")
    p("K1_ATT:")
    p(f"s_mov_b32 {sStage}, {sStage0}")
    a_phase(p)
    t = T
    p(f"""v_mov_b32 {vr(t)}, {vr(L)}
    v_mov_b32 {vr(t+1)}, {vr(L8)}
    s_nop 1
    v_permlane32_swap_b32 {vr(L)}, {vr(t)}
    v_permlane16_swap_b32 {vr(L8)}, {vr(t+1)}
    v_add_f32 {vr(L)}, {vr(L)}, {vr(t)}
    v_add_f32 {vr(L8)}, {vr(L8)}, {vr(t+1)}
    v_rcp_f32 {vr(t+2)}, {vr(L)}
    v_mov_b32 {vr(t+1)}, {vr(L8)}
    s_mov_b32 s3, 0x4e800000
    s_mov_b32 s4, 0x30800000
    v_permlane32_swap_b32 {vr(L8)}, {vr(t+1)}
    v_add_f32 {vr(L8)}, {vr(L8)}, {vr(t+1)}
    v_cmp_nge_f32 vcc, s3, {vr(L)}
    v_cmp_nle_f32 s[6:7], s4, {vr(L)}
    v_cmp_nge_f32 s[50:51], s3, {vr(L8)}
    s_mov_b32 s5, {sW4096}
    s_or_b64 vcc, vcc, s[6:7]
    s_or_b64 vcc, vcc, s[50:51]
    s_cselect_b32 s3, 1, 0
    s_lshl_b32 s5, s5, 1
    v_mov_b32 {vr(t+1)}, s3
    v_add_u32 {vr(t+3)}, s5, {vr(vLin)}""")
    for D in range(8):
        p(f"ds_write_b128 {vr(t+3)}, {ar(aO8+4*D,4)} offset:{D*1024}")
    p(f"ds_write_b32 {vr(vL8w)}, {vr(L8)}")
    p(f"ds_write_b32 {vr(vL8w)}, {vr(t+1)} offset:256")
    p(f"s_add_u32 {sOoff2}, {sOoff}, 4096")
    for k in range(8):
        for j in range(0, 8, 2):
            p(f"v_pk_mul_f32 {vr(O+8*k+j,2)}, {vr(O+8*k+j,2)}, {vr(t+2,2)} op_sel_hi:[1,0]")
        for j in range(4):
            p(f"v_cvt_pk_bf16_f32 {vr(O+8*k+j)}, {vr(O+8*k+2*j)}, {vr(O+8*k+2*j+1)}")
        p(f"buffer_store_dwordx4 {vr(O+8*k,4)}, {vr(vLin)}, {sWS}, {sOoff if k < 4 else sOoff2} offen offset:{(k&3)*1024} {OST_FLAGS}")
    p("s_waitcnt lgkmcnt(0)")
    p("s_barrier")
    M = S
    for v in range(4):
        p(f"ds_read_b128 {vr(M+8*v,4)}, {vr(vMrg)} offset:{v*8192}")
        p(f"ds_read_b128 {vr(M+8*v+4,4)}, {vr(vMrg)} offset:{v*8192+256}")
    p(f"ds_read_b128 {vr(P,4)}, {vr(vL8r)}")
    p(f"ds_read_b128 {vr(P+4,4)}, {vr(vL8r)} offset:256")
    p(f"""v_add_f32 {vr(P)}, {vr(P)}, {vr(P+1)}
    v_add_f32 {vr(P+2)}, {vr(P+2)}, {vr(P+3)}
    v_or_b32 {vr(P+4)}, {vr(P+4)}, {vr(P+5)}
    v_add_f32 {vr(P)}, {vr(P)}, {vr(P+2)}
    v_or3_b32 {vr(P+4)}, {vr(P+4)}, {vr(P+6)}, {vr(P+7)}
    v_cmp_nle_f32 vcc, s4, {vr(P)}
    v_cmp_ne_u32 s[6:7], 0, {vr(P+4)}
    v_rcp_f32 {vr(P+2)}, {vr(P)}
    s_nop 1
    s_or_b64 vcc, vcc, s[6:7]
    s_cselect_b32 s3, 1, 0
    s_cmp_gt_u32 s3, {sRetry}
    s_cbranch_scc1 K1_SLOW""")
    for j in range(8):
        p(f"v_add_f32 {vr(M+j)}, {vr(M+j)}, {vr(M+8+j)}")
        p(f"v_add_f32 {vr(M+16+j)}, {vr(M+16+j)}, {vr(M+24+j)}")
    for j in range(8):
        p(f"v_add_f32 {vr(M+j)}, {vr(M+j)}, {vr(M+16+j)}")
    for j in range(8):
        p(f"v_mul_f32 {vr(M+j)}, {vr(M+j)}, {vr(P+2)}")
    for j in range(4):
        p(f"v_cvt_pk_bf16_f32 {vr(M+j)}, {vr(M+2*j)}, {vr(M+2*j+1)}")
    p(f"""buffer_store_dwordx4 {vr(M,4)}, {vr(vO8)}, {sWS}, {sO8off} offen {OST_FLAGS}
    s_add_u32 {sPair}, {sPair}, 131072
    s_add_u32 {sOoff}, {sOoff}, 8192
    s_add_u32 {sO8off}, {sO8off}, 8192
    s_add_u32 {sIter}, {sIter}, 1""")
    if STAMP:
        p(f"""s_cmp_eq_u32 {sIter}, 1
        s_cbranch_scc0 K1_ST2
        s_memrealtime s[66:67]
        s_waitcnt lgkmcnt(0)
        s_mov_b32 s62, s64
        K1_ST2:""")
    p(f"""s_cmp_lt_u32 {sIter}, 2
    s_cbranch_scc1 K1_HEAD""")
    if STAMP:
        p(f"""s_waitcnt vmcnt(0)
        s_memrealtime s[68:69]
        s_waitcnt lgkmcnt(0)
        s_lshl_b32 s3, s2, 2
        s_add_u32 s3, s3, {sW}
        s_lshl_b32 s3, s3, 5
        s_add_u32 s3, s3, {2*OBLK}
        s_mov_b32 s26, {2*OBLK + 65536}
        v_mov_b32 v0, s60
        v_mov_b32 v1, s62
        v_mov_b32 v2, s66
        v_mov_b32 v3, s64
        v_mov_b32 v4, s68
        v_mov_b32 v5, 0
        s_mov_b64 exec, 1
        buffer_store_dwordx4 v[0:3], v5, {sWS}, s3 offen
        buffer_store_dword v4, v5, {sWS}, s3 offen offset:16""")
    p("K1_END:")
    p("s_endpgm")
    p("K1_SLOW:")
    F = POOL
    p(f"""s_waitcnt vmcnt(0) lgkmcnt(0)
    s_barrier
    s_mov_b32 {sRetry}, 1
    v_and_b32 {t0}, 31, {ln}
    v_lshrrev_b32 {t1}, 5, {ln}
    v_lshlrev_b32 {t1}, 4, {t1}
    v_lshl_add_u32 {t0}, {t0}, 8, {t1}
    v_and_b32 {t2}, 15, {ln}
    v_lshrrev_b32 {t1}, 4, {ln}
    v_lshlrev_b32 {t1}, 4, {t1}
    v_lshl_add_u32 {t2}, {t2}, 8, {t1}
    v_mov_b32 {t3}, 0xff800000
    v_mov_b32 {t4}, 0xff800000
    s_mov_b32 s3, {sPair}
    s_mov_b32 s4, 0
    K1_SLOW_L:""")
    for sl in range(8):
        p(f"""s_lshl_b32 s5, {sW}, 1
        s_add_u32 s5, s5, {sl}
        s_and_b32 s5, s5, 7
        s_lshl_b32 s5, s5, 5
        s_add_u32 s5, s5, s3
        buffer_load_dwordx4 {vr(F+4*sl,4)}, {t0}, {sK}, s5 offen""")
    p("s_waitcnt vmcnt(0)")
    for sl in range(8):
        p(f"v_mfma_f32_32x32x16_bf16 {vr(S,16)}, {vr(F+4*sl,4)}, {ar(aQ+4*sl,4)}, {'0' if sl == 0 else vr(S,16)}")
    p("s_nop 4")
    p(f"s_add_u32 s5, s3, 4096")
    for kt in range(2):
        for sp in range(4):
            p(f"buffer_load_dwordx4 {vr(F+16*kt+4*sp,4)}, {t2}, {sK}, {'s3' if kt == 0 else 's5'} offen offset:{sp*64}")
    p("s_waitcnt vmcnt(0)")
    for kt in range(2):
        for sp in range(4):
            p(f"v_mfma_f32_16x16x32_bf16 {vr(S8+4*kt,4)}, {vr(F+16*kt+4*sp,4)}, {ar(aQ8+4*sp,4)}, {'0' if sp == 0 else vr(S8+4*kt,4)}")
    p("s_nop 15")
    for j in range(0, 16, 2): p(f"v_max3_f32 {t3}, {t3}, {vr(S+j)}, {vr(S+j+1)}")
    for j in range(0, 8, 2): p(f"v_max3_f32 {t4}, {t4}, {vr(S8+j)}, {vr(S8+j+1)}")
    p(f"""s_add_u32 s3, s3, 8192
    s_add_u32 s4, s4, 1
    s_cmp_lt_u32 s4, 16
    s_cbranch_scc1 K1_SLOW_L
    v_mov_b32 {t0}, {t3}
    v_mov_b32 {t1}, {t4}
    s_nop 1
    v_permlane32_swap_b32 {t3}, {t0}
    v_permlane16_swap_b32 {t4}, {t1}
    v_max_f32 {t3}, {t3}, {t0}
    v_max_f32 {t4}, {t4}, {t1}
    v_mov_b32 {t1}, {t4}
    s_nop 1
    v_permlane32_swap_b32 {t4}, {t1}
    v_max_f32 {t4}, {t4}, {t1}""")
    for j in range(16): p(f"v_sub_f32 {vr(NEGM+j)}, 0, {t3}")
    for j in range(4): p(f"v_sub_f32 {vr(NEGM8+j)}, 0, {t4}")
    p(f"""s_mov_b32 {sKoff}, {sPair}
    s_mov_b32 {sVoff}, {sPair}""")
    for g in u_dma(0) + u_dma(1): p.ext(g)
    p("""s_waitcnt vmcnt(0)
    s_barrier
    s_branch K1_ATT""")
    return p.L

def k2():
    p = Prog()
    sWO, sWSr, sOUT = "s[8:11]", "s[12:15]", "s[16:19]"
    sW, sBlk, sI, sJ = "s28", "s29", "s30", "s31"
    sOo = ["s32", "s33", "s34"]; sWo = "s35"; sM0 = "s36"; sKs = "s37"; sOb = "s38"; sWb = "s39"
    ACC = 0
    OF = 96
    WF = 144
    vLin, dWO, aWO, vLane, T = 160, 161, 162, 164, 165
    vOut = 172
    vRd = 175
    t0, t1, t2, t3, t4 = [vr(T+i) for i in range(5)]
    ln = vr(vLane)
    p(f"""s_cmp_ge_u32 s2, 216
    s_cbranch_scc1 K2_END
    s_load_dwordx2 s[52:53], s[0:1], 32
    s_load_dwordx2 s[54:55], s[0:1], 72
    s_load_dwordx2 s[16:17], s[0:1], 80
    s_load_dwordx2 s[12:13], s[0:1], 96
    v_and_b32 {ln}, 63, v0
    v_lshrrev_b32 v1, 6, v0
    s_and_b32 s3, s2, 7
    v_readfirstlane_b32 {sW}, v1
    s_lshr_b32 s4, s2, 3
    s_lshr_b32 {sBlk}, s3, 2
    s_and_b32 s3, s3, 3
    s_mul_i32 s3, s3, 3
    s_mul_i32 s5, s4, 57
    s_lshr_b32 s5, s5, 9
    s_add_u32 {sI}, s3, s5
    s_mul_i32 s6, s5, 9
    s_sub_u32 {sJ}, s4, s6
    s_mov_b32 s10, 4718592
    s_mov_b32 s11, 0x20000
    s_mov_b32 s14, {2*OBLK}
    s_mov_b32 s15, 0x20000
    s_mov_b32 s18, 2654208
    s_mov_b32 s19, 0x20000
    s_mul_i32 s6, s5, 3
    s_add_u32 {sKs}, s6, {sJ}
    s_and_b32 {sKs}, {sKs}, 15
    s_lshl_b32 {sKs}, {sKs}, 2
    s_mul_i32 {sOb}, {sBlk}, {OBLK}
    s_mul_i32 s6, {sI}, {3*262144}
    s_add_u32 {sOb}, {sOb}, s6
    s_lshl_b32 s6, {sW}, 16
    s_add_u32 {sOb}, {sOb}, s6
    s_mul_i32 {sWb}, {sW}, {1024*1152}
    s_lshl_b32 s6, {sJ}, 7
    s_add_u32 {sWb}, {sWb}, s6
    s_lshl_b32 {sM0}, {sW}, 13
    v_lshlrev_b32 {vr(vLin)}, 4, {ln}
    v_lshrrev_b32 {t0}, 3, {ln}
    v_mul_u32_u24 {t0}, 1152, {t0}
    v_bfe_u32 {t1}, {ln}, 4, 1
    v_lshlrev_b32 {t1}, 2, {t1}
    v_and_b32 {t2}, 7, {ln}
    v_xor_b32 {t1}, {t1}, {t2}
    v_lshl_add_u32 {vr(dWO)}, {t1}, 4, {t0}
    v_add_u32 {vr(T+6)}, {8*1152-1024}, {vr(dWO)}
    s_waitcnt lgkmcnt(0)
    s_cmp_eq_u32 {sBlk}, 0
    s_cselect_b64 s[8:9], s[52:53], s[54:55]""")
    dWO2 = T + 6
    def loads(k):
        st = k % 4
        g = [[f"s_lshl_b32 {sOo[0]}, {sKs}, 10", f"s_mul_i32 {sWo}, {sKs}, {16*1152}"],
             [f"s_add_u32 {sOo[0]}, {sOo[0]}, {sOb}", f"s_add_u32 {sWo}, {sWo}, {sWb}", f"s_add_u32 m0, {sM0}, {st*2048}"],
             [f"s_add_u32 {sOo[1]}, {sOo[0]}, 262144", f"buffer_load_dwordx4 {vr(dWO)}, {sWO}, {sWo} offen {W_FLAGS} lds",
              f"s_add_u32 {sOo[2]}, {sOo[0]}, 524288", f"buffer_load_dwordx4 {vr(dWO2)}, {sWO}, {sWo} offen offset:1024 {W_FLAGS} lds"],
             [f"buffer_load_dwordx4 {vr(OF+12*st,4)}, {vr(vLin)}, {sWSr}, {sOo[0]} offen", f"s_add_u32 {sKs}, {sKs}, 1"],
             [f"buffer_load_dwordx4 {vr(OF+12*st+4,4)}, {vr(vLin)}, {sWSr}, {sOo[1]} offen", f"s_and_b32 {sKs}, {sKs}, 63"],
             [f"buffer_load_dwordx4 {vr(OF+12*st+8,4)}, {vr(vLin)}, {sWSr}, {sOo[2]} offen"]]
        return g
    for k in range(3):
        for g in loads(k): p.ext(g)
    p(f"""v_lshrrev_b32 {t0}, 5, {ln}
    v_bfe_u32 {t1}, {ln}, 2, 2
    v_lshl_add_u32 {t0}, {t0}, 3, {t1}
    v_lshlrev_b32 {t0}, 7, {t0}
    v_add_u32 {t0}, {sM0}, {t0}
    v_bfe_u32 {t2}, {ln}, 4, 1
    v_and_b32 {t3}, 1, {ln}
    v_lshl_add_u32 {t2}, {t2}, 1, {t3}
    v_bfe_u32 {t3}, {ln}, 1, 1
    v_lshl_add_u32 {t2}, {t2}, 1, {t3}
    v_lshl_add_u32 {t0}, {t2}, 3, {t0}
    v_lshrrev_b32 {t1}, 1, {t1}
    v_lshl_add_u32 {vr(aWO)}, {t1}, 6, {t0}
    v_xor_b32 {vr(aWO+1)}, 64, {vr(aWO)}""")
    def reads(k):
        f = WF + 8 * (k & 1)
        return [f"ds_read_b64_tr_b16 {vr(f+4*N+2*u,2)}, {vr(aWO+N)} offset:{(k%4)*2048+u*512}" for N in range(2) for u in range(2)]
    p("s_waitcnt vmcnt(13)")
    p.ext(reads(0))
    def body(ks, first, last):
        mf = []; ds = {}; misc = {}
        for k in ks:
            g0 = len(mf)
            f = WF + 8 * (k & 1); o = OF + 12 * (k % 4)
            for r in range(3):
                for N in range(2):
                    acc = ACC + 16 * (2*r + N)
                    c = "0" if (first and k == ks[0]) else vr(acc, 16)
                    mf.append(f"v_mfma_f32_32x32x16_bf16 {vr(acc,16)}, {vr(f+4*N,4)}, {vr(o+4*r,4)}, {c}")
            rem = (ks[-1] - k) if last else 99
            if rem >= 1:
                cnt = 8 if rem >= 2 else 3
                ds.setdefault(g0, []).extend([f"s_waitcnt vmcnt({cnt})"] + reads(k + 1))
            if rem >= 3:
                for gi, g in enumerate(loads(k + 3)): misc.setdefault(g0 + gi, []).extend(g)
            if rem >= 1:
                cnt = 10 if rem >= 3 else (5 if rem == 2 else 0)
                misc.setdefault(g0 + 5, []).append(f"s_waitcnt vmcnt({cnt})")
        return weave(mf, ds, misc, [])
    p("s_waitcnt vmcnt(10)")
    L = body([0, 1, 2, 3], True, False)
    p.ext(L)
    p("s_mov_b32 s40, 14")
    p("s_waitcnt lgkmcnt(0)")
    p("K2_LOOP:")
    p.ext(body([0, 1, 2, 3], False, False))
    p("""s_sub_u32 s40, s40, 1
    s_cmp_lg_u32 s40, 0
    s_waitcnt lgkmcnt(0)
    s_cbranch_scc1 K2_LOOP""")
    p.ext(body([0, 1, 2, 3], False, True))
    p(f"""s_mul_i32 s3, {sW}, 24576
    s_add_u32 s3, s3, 32768
    v_add_u32 {t0}, s3, {vr(vLin)}
    s_mul_i32 s3, {sW}, 6144
    s_add_u32 s3, s3, 32768
    v_add_u32 {vr(vRd)}, s3, {vr(vLin)}
    s_nop 7""")
    for q in range(24):
        p(f"ds_write_b128 {t0}, {vr(ACC+4*q,4)} offset:{q*1024}")
    p(f"""v_and_b32 {t1}, 31, {ln}
    v_lshrrev_b32 {t2}, 5, {ln}
    v_lshlrev_b32 {t2}, 4, {t2}""")
    for gi in range(3):
        p(f"""s_mul_i32 s3, {sW}, 3
        s_add_u32 s3, s3, {gi}
        s_lshr_b32 s4, s3, 2
        s_and_b32 s3, s3, 3
        s_lshl_b32 s3, s3, 5
        s_mul_i32 s5, {sI}, 3
        s_add_u32 s4, s4, s5
        s_mul_i32 s5, s4, 57
        s_lshr_b32 s5, s5, 9
        s_mul_i32 s6, s5, 9
        s_sub_u32 s4, s4, s6
        s_mul_i32 s5, s5, 288
        s_lshr_b32 s6, s4, 2
        s_mul_i32 s6, s6, 144
        s_and_b32 s7, s4, 3
        s_lshl_b32 s7, s7, 5
        s_add_u32 s6, s6, s7
        s_cmp_eq_u32 s4, 8
        s_cselect_b32 s6, 128, s6
        s_cselect_b32 s7, 128, 0
        s_add_u32 s5, s5, s6
        v_lshrrev_b32 {t3}, 4, {t1}
        v_mul_u32_u24 {t3}, s7, {t3}
        v_add3_u32 {t3}, {t3}, {t1}, s5
        v_mul_u32_u24 {t3}, 2304, {t3}
        s_mul_i32 s6, {sBlk}, 1152
        s_add_u32 s3, s3, s6
        s_lshl_b32 s6, {sJ}, 7
        s_add_u32 s3, s3, s6
        v_add3_u32 {vr(vOut+gi)}, {t3}, {t2}, s3""")
    p("s_waitcnt lgkmcnt(0)")
    p("s_barrier")
    p(f"v_add_u32 {t0}, 49152, {vr(vRd)}")
    for gi in range(3):
        R = 32 * gi
        for v in range(4):
            for hf in range(2):
                a = vr(vRd) if v < 2 else t0
                p(f"ds_read_b128 {vr(R+8*v+4*hf,4)}, {a} offset:{(v&1)*24576 + gi*2048 + hf*1024}")
        p("s_waitcnt lgkmcnt(0)")
        for j in range(8):
            p(f"v_add_f32 {vr(R+j)}, {vr(R+j)}, {vr(R+8+j)}")
            p(f"v_add_f32 {vr(R+16+j)}, {vr(R+16+j)}, {vr(R+24+j)}")
        for j in range(8): p(f"v_add_f32 {vr(R+j)}, {vr(R+j)}, {vr(R+16+j)}")
        for j in range(4): p(f"v_cvt_pk_bf16_f32 {vr(R+j)}, {vr(R+2*j)}, {vr(R+2*j+1)}")
        p(f"buffer_store_dwordx4 {vr(R,4)}, {vr(vOut+gi)}, {sOUT}, 0 offen")
    p("K2_END:")
    p("s_endpgm")
    return p.L

def desc(name, nv, ao):
    return f""".amdhsa_kernel {name}
  .amdhsa_next_free_vgpr {nv}
  .amdhsa_next_free_sgpr 96
  .amdhsa_accum_offset {ao}
  .amdhsa_group_segment_fixed_size 0
  .amdhsa_kernarg_size 104
  .amdhsa_user_sgpr_count 2
  .amdhsa_user_sgpr_kernarg_segment_ptr 1
  .amdhsa_system_sgpr_workgroup_id_x 1
.end_amdhsa_kernel
"""

def main():
    a = auto_lgkm(k1()); b = auto_lgkm(k2())
    bad = check_hazards(a) + check_hazards(b)
    hdr = open('cdna_kernels/' + NAME + '.s.ref').read().split('; Override launch')[0]
    s = hdr
    s += f"; @launch kernel=attn_kernel grid=(256,1,1) block=(256,1,1) lds=163840\n"
    s += f"; @launch kernel=oproj_kernel grid=(216,1,1) block=(256,1,1) lds=131072\n"
    s += '.amdgcn_target "amdgcn-amd-amdhsa--gfx950"\n.text\n'
    for nm, body in (("attn_kernel", a), ("oproj_kernel", b)):
        s += f".globl {nm}\n.p2align 8\n.type {nm},@function\n{nm}:\n" + "\n".join(body) + "\n"
    s += '.section .rodata,"a"\n.p2align 6\n' + desc("attn_kernel", NV1 + NA1, NV1) + ".p2align 6\n" + desc("oproj_kernel", 176, 176)
    out = [x for x in sys.argv[1:] if x.startswith("out=")]
    fn = out[0][4:] if out else "cdna_kernels/" + NAME + ".s"
    open(fn, "w").write(s)
    print("written", fn, len(a), len(b), "hazards:", len(bad))
main()
```

```python
import re

REG = re.compile(r'^(-|abs\()?([vas])(?:(\d+)|\[(\d+):(\d+)\])\)?$')
def regs_of(tok):
    tok = tok.strip()
    if tok in ('vcc', 'exec', 'm0', 'scc'): return [tok]
    if tok in ('vcc_lo', 'vcc_hi'): return ['vcc']
    if tok in ('exec_lo', 'exec_hi'): return ['exec']
    m = REG.match(tok)
    if not m: return []
    k = m.group(2)
    if m.group(3) is not None: return [f"{k}{m.group(3)}"]
    return [f"{k}{i}" for i in range(int(m.group(4)), int(m.group(5)) + 1)]

TRANS = ('v_exp_f32', 'v_log_f32', 'v_rcp_f32', 'v_rsq_f32', 'v_sqrt_f32', 'v_sin_f32', 'v_cos_f32')
class Ins:
    def __init__(self, text):
        self.text = text
        t = text.split(';')[0].strip()
        self.label = t.endswith(':') or t.startswith('.') or t == ''
        self.op = ''; self.dst = []; self.src = []; self.kind = 'none'
        if self.label: return
        parts = t.split(None, 1)
        op = self.op = parts[0]
        ops = []
        if len(parts) > 1:
            rest = parts[1]
            toks = re.split(r',\s*(?![^\[]*\])', rest)
            for tk in toks:
                sub = tk.strip().split()
                ops.append(sub[0] if sub else '')
            self.mods = ' '.join(toks[-1].strip().split()[1:]) if toks else ''
        else:
            self.mods = ''
        R = [regs_of(o) for o in ops]
        flat = lambda L: [r for x in L for r in x]
        if op.startswith('v_mfma'):
            self.kind = 'mfma'; self.dst = R[0]; self.src = flat(R[1:]); self.A = R[1]; self.B = R[2]; self.C = R[3]
            self.passes = 8 if '32x32' in op else 4
        elif op.startswith('ds_read') or op.startswith('ds_bpermute') or op.startswith('ds_swizzle'):
            self.kind = 'ds'; self.dst = R[0]; self.src = flat(R[1:])
        elif op.startswith('ds_'):
            self.kind = 'ds'; self.src = flat(R)
        elif op.startswith('buffer_load') or op.startswith('global_load'):
            self.kind = 'vmem'
            if ' lds' in ' ' + self.mods or '_lds_' in op:
                self.src = flat(R) + ['m0']; self.dma = True
            else:
                self.dst = R[0]; self.src = flat(R[1:])
        elif op.startswith('buffer_store') or op.startswith('global_store'):
            self.kind = 'vmem'; self.src = flat(R); self.store = True
            self.data = R[0] if op.startswith('buffer') else R[1]
        elif op.startswith('buffer_atomic') or op.startswith('global_atomic'):
            self.kind = 'vmem'; self.src = flat(R)
            if 'sc0' in self.mods: self.dst = R[0]
        elif op.startswith('buffer_') :
            self.kind = 'vmem'
        elif op.startswith('v_'):
            self.kind = 'valu'
            self.dst = list(R[0]); self.src = flat(R[1:])
            if op.startswith('v_permlane') or op.startswith('v_swap'):
                self.dst = R[0] + R[1]; self.src = R[0] + R[1]
            if op.startswith('v_fmac') or op.startswith('v_writelane'): self.src += R[0]
            if op.startswith('v_cmpx'): self.dst += ['exec']
            if '_co_' in op: self.dst += R[1]; self.src = flat(R[2:])
            if op.startswith('v_cndmask') and len(R) == 3: self.src += ['vcc']
        elif op.startswith('s_'):
            self.kind = 'salu'
            if op.startswith('s_load') or op.startswith('s_memtime') or op.startswith('s_memrealtime') or op.startswith('s_buffer_load'):
                self.kind = 'smem'; self.dst = R[0]; self.src = flat(R[1:])
            elif op.startswith(('s_cmp', 's_cbranch', 's_branch', 's_waitcnt', 's_barrier', 's_nop', 's_endpgm', 's_sleep', 's_setprio', 's_bitcmp')):
                self.src = flat(R)
            else:
                self.dst = list(R[0]) if R else []; self.src = flat(R[1:])
                if 'saveexec' in op: self.dst += ['exec']; self.src += ['exec']
        self.trans = op.replace('_e32', '').replace('_e64', '') in TRANS
    def states(self):
        if self.label: return 0
        if self.op == 's_nop': return int(self.text.split(';')[0].split()[1], 0) + 1
        return 1

def check_hazards(lines, verbose=True):
    ins = [Ins(l) for l in lines]
    probs = []
    n = len(ins)
    for i, p in enumerate(ins):
        if p.label: continue
        dist = 0
        for j in range(i + 1, n):
            c = ins[j]
            if c.label: continue
            need = 0
            pd = set(p.dst);
            cs = set(c.src); cd = set(c.dst)
            if p.kind == 'valu':
                vd = {r for r in pd if r[0] in 'va' and r not in ('vcc',)}
                sd = {r for r in pd if r[0] == 's' or r == 'vcc'}
                if c.kind == 'mfma' and vd & cs: need = max(need, 2)
                if c.op.startswith('v_permlane') and vd & cs: need = max(need, 2)
                if c.op.startswith(('v_readfirstlane', 'v_readlane')) and vd & cs: need = max(need, 1)
                if p.trans and c.kind in ('valu',) and not c.trans and vd & cs: need = max(need, 1)
                if p.trans and c.kind in ('mfma',) and vd & cs: need = max(need, 2)
                if c.kind == 'vmem' and sd & cs: need = max(need, 5)
                if c.kind == 'valu' and sd & cs: need = max(need, 2)
                if c.kind == 'salu' and sd & cs: need = max(need, 1)
                if 'exec' in pd and c.kind == 'mfma': need = max(need, 4)
                if 'dpp' in c.text and vd & cs: need = max(need, 2)
            if p.kind == 'mfma':
                big, mid, war = (12, 10, 7) if p.passes == 8 else (8, 6, 3)
                if c.kind == 'mfma':
                    if pd & (set(c.A) | set(c.B)): need = max(need, big)
                    if pd & set(c.C):
                        if not (c.C == p.dst and c.passes == p.passes): need = max(need, mid)
                    elif pd & cd and not (c.dst == p.dst and c.passes == p.passes): need = max(need, mid)
                elif c.kind in ('valu', 'ds', 'vmem'):
                    if pd & (cs | cd): need = max(need, big)
                    if c.kind == 'valu' and set(p.C) & cd: need = max(need, war)
            if p.kind == 'salu' and 'm0' in pd and getattr(c, 'dma', False): need = max(need, 1)
            if getattr(p, 'store', False) and len(p.data) >= 3 and set(p.data) & cd: need = max(need, 2 if c.kind == 'valu' else 1)
            if p.kind == 'ds' and p.op.startswith('ds_write') and c.kind == 'valu' and False: pass
            if need > dist:
                probs.append((i, j, need, dist, p.text, c.text))
            dist += c.states()
            if dist >= 20: break
    if verbose:
        for pr in probs: print("HAZARD need %d have %d:\n   %s\n   %s" % (pr[2], pr[3], pr[4].strip(), pr[5].strip()))
    return probs

def auto_lgkm(lines, group=2, maxcnt=15):
    ins = [Ins(l) for l in lines]
    out = []
    pend = []
    def need_n(c):
        touch = set(c.src) | set(c.dst)
        last = -1
        for k, d in enumerate(pend):
            if d & touch: last = k
        return last
    i = 0
    for i, c in enumerate(ins):
        if c.label:
            out.append(c.text); continue
        if c.op == 's_waitcnt':
            m = re.search(r'lgkmcnt\((\d+)\)', c.text)
            if m:
                N = int(m.group(1))
                if len(pend) > N: pend = pend[len(pend) - N:] if N else []
            out.append(c.text); continue
        last = need_n(c)
        if last >= 0:
            if c.kind == 'mfma' and group > 1:
                seen = 1
                for j in range(i + 1, len(ins)):
                    d = ins[j]
                    if d.label or d.op in ('s_barrier',) or d.op.startswith(('s_cbranch', 's_branch')): break
                    if d.kind == 'mfma':
                        l2 = need_n(d)
                        if l2 > last: last = l2
                        seen += 1
                        if seen >= group: break
            N = len(pend) - 1 - last
            assert N <= maxcnt, ("lgkmcnt overflow", N, c.text)
            out.append(f"    s_waitcnt lgkmcnt({N})")
            pend = pend[last + 1:]
        if c.kind == 'ds':
            pend.append(set(c.dst))
        elif c.kind == 'smem' and not c.op.startswith('s_mem'):
            pend.append(set(c.dst))
        if len(pend) > maxcnt + 1:
            pass
        out.append(c.text)
    return out

class Prog:
    def __init__(self): self.L = []
    def __call__(self, s):
        for l in s.split('\n'):
            if l.strip(): self.L.append('    ' + l.strip() if not l.strip().endswith(':') else l.strip())
    def ext(self, L):
        for l in L: self(l)

def weave(mf, gaps_ds, gaps_misc, valu, budget=None):
    out = []
    q = list(valu)
    n = len(mf)
    def cost(t):
        t = t.strip()
        if t.startswith('@'): return 1
        if t.split()[0] in TRANS: return 2
        if t.startswith('s_nop'): return int(t.split()[1]) + 1
        return 1
    carry = 0.0
    for i, m in enumerate(mf):
        out.append(m)
        cap = 6 if '32x32' in m else 2
        if budget: cap = budget(i, cap)
        used = 0
        for t in gaps_ds.get(i, []) + gaps_misc.get(i, []):
            out.append(t); used += cost(t)
        used += 0.5
        while q and q[0][1] <= i:
            c = cost(q[0][0])
            must = any(it[2] <= i for it in q)
            if used + c <= cap + carry or must:
                out.append(q.pop(0)[0]); used += c
            else: break
        carry = min(max(cap + carry - used, -1.0), 0.5)
    assert not q, ("valu left over", q[:3])
    return out


def auto_vm(lines, maxcnt=63):
    out = []
    pend = []
    for l in lines:
        t = l.strip()
        if t.startswith('@waitvm'):
            parts = t.split(None, 2)
            tags = parts[1].split(',')
            extra = parts[2] if len(parts) > 2 else ''
            last = -1
            for k, (tg, d) in enumerate(pend):
                if tg in tags: last = k
            if last >= 0:
                N = len(pend) - 1 - last
                N = min(N, maxcnt)
                out.append(f"    s_waitcnt vmcnt({N}) {extra}".rstrip())
                pend = pend[len(pend) - N:] if N else []
            elif extra:
                out.append(f"    s_waitcnt {extra}")
            continue
        c = Ins(l)
        if c.label:
            out.append(l); continue
        if c.op == 's_waitcnt':
            m = re.search(r'vmcnt\((\d+)\)', l)
            if m and '@nocount' not in l:
                N = int(m.group(1))
                if len(pend) > N: pend = pend[len(pend) - N:] if N else []
            out.append(l); continue
        touch = set(c.src) | set(c.dst)
        last = -1
        for k, (tg, d) in enumerate(pend):
            if d & touch: last = k
        if last >= 0:
            N = min(len(pend) - 1 - last, maxcnt)
            out.append(f"    s_waitcnt vmcnt({N})")
            pend = pend[len(pend) - N:] if N else []
        if c.kind == 'vmem' and '@nocount' not in l:
            m = re.search(r'@tag=(\w+)', l)
            pend.append((m.group(1) if m else None, set(c.dst)))
        out.append(l)
    return out

def merge_waits(lines):
    out = []
    for l in lines:
        t = l.strip()
        if t.startswith('s_waitcnt') and out and out[-1].strip().startswith('s_waitcnt') and '@' not in t and '@' not in out[-1]:
            a = dict(re.findall(r'(\w+)\((\d+)\)', out[-1])); b = dict(re.findall(r'(\w+)\((\d+)\)', t))
            for k, v in b.items(): a[k] = str(min(int(v), int(a.get(k, 99))))
            out[-1] = '    s_waitcnt ' + ' '.join(f"{k}({v})" for k, v in a.items())
        else: out.append(l)
    return out
def strip(lines):
    return [l.split(';')[0].strip() for l in lines if l.split(';')[0].strip()]
```

```python
import sys
from asmlib import *

NAME = "concat_heads__mha_block_cached__mha_block_cached__near_ridge"
OPT = dict(kv="nt", w="", ost="sc1", old="sc1", smode="", seq0="QAQPAPF", seq1="QQAAPPF")
for a in sys.argv[1:]:
    if "=" in a:
        k, v = a.split("=", 1); OPT[k] = v.replace("+", " ")
KV_FLAGS, W_FLAGS, OST, OLD = OPT["kv"], OPT["w"], OPT["ost"], OPT["old"]
STAMP = "stamp" in sys.argv

def vr(b, n=1): return f"v{b}" if n == 1 else f"v[{b}:{b+n-1}]"
def ar(b, n=1): return f"a{b}" if n == 1 else f"a[{b}:{b+n-1}]"
K = 1024
OHEAD = 36864
OSIZE = 512 * OHEAD
PART = OSIZE
PSIZE = 64 * 16 * 24 * 1024
FLAGS = OSIZE + PSIZE
WSSIZE = FLAGS + 16384
sX, sK, sV, sWQ, sWS, sWO, sOUT, sDBG = "s[8:11]", "s[12:15]", "s[16:19]", "s[20:23]", "s[24:27]", "s[28:31]", "s[32:35]", "s[36:37]"
names = "sW sW4096 sXm0 sPair sKoff sVoff sWQoff sXoff sStage sB sBlk sG sJ sXbase sWQbase sOst sRetry sStage0 sWOm0 sWOoff sOld sRot sObase sWObase sFlG sFlS".split()
for i, n in enumerate(names): globals()[n] = f"s{38+i}"
sScale = "s4"
sT0, sT1, sT2, sT3 = "s3", "s6", "s7", "s64"
STB = 66
O = 0; S = 64; P = 96; POOL = 112; S8 = 144; P8 = 152; NEGM = 156; NEGM8 = 172; L = 176; L8 = 177; T = 178
aK = 186; aK8 = 194; aV = 198; aV8 = 202; aWQ = 210; aX = 214; aX8 = 218
dK = 222; dV = 226; dWQ = 228; dX = 232
vLin = 237; vOst = 238; vQ8w = 239; vL8w = 240; vL8r = 241; vLane = 242; vZero = 243; vInit = 253; dWO = 244
NV = 256
aQ = 0; aQ8 = 32; aO8 = 48; aPark = 80; aPacc = 128
NA = 216
XSLOT = [64*K, 44*K, 84*K]; XBASE = 44*K
WSLOT = [128*K, 144*K, 112*K]; WBASE = 112*K
Q8BUF = 104*K
L8BUF = 84*K

nstamp = [2]
cur = [""]
def st(detail=False):
    if not STAMP or nstamp[0] >= 16: return []
    if detail != (OPT["smode"] != ""): return []
    if detail and cur[0] != OPT["smode"]: return []
    k = nstamp[0]; nstamp[0] += 1
    return [f"s_memtime s[{STB+2*k}:{STB+2*k+1}]"]

def q_dma(slot, tag):
    g = []
    t = f";@tag={tag}"
    g.append([f"s_mul_i32 {sWQoff}, {sStage}, {64*8192}", f"s_add_u32 {sWQoff}, {sWQoff}, {sWQbase}"])
    g.append([f"s_lshl_b32 {sXoff}, {sStage}, 7", f"s_add_u32 {sXoff}, {sXoff}, {sXbase}"])
    g.append([f"s_add_u32 m0, {sW4096}, {WSLOT[slot]}", f"s_add_u32 {sStage}, {sStage}, 1",
              f"buffer_load_dwordx4 {vr(dWQ)}, {sWQ}, {sWQoff} offen {W_FLAGS} lds {t}"])
    for i in range(1, 4):
        g.append([f"buffer_load_dwordx4 {vr(dWQ+i)}, {sWQ}, {sWQoff} offen offset:{i*1024} {W_FLAGS} lds {t}"])
    g.append([f"s_add_u32 m0, {sXm0}, {XSLOT[slot]}", f"s_cmp_eq_u32 {sStage}, 9",
              f"buffer_load_dwordx4 {vr(dX)}, {sX}, {sXoff} offen {W_FLAGS} lds {t}"])
    g.append([f"s_cselect_b32 {sStage}, 0, {sStage}",
              f"buffer_load_dwordx4 {vr(dX+1)}, {sX}, {sXoff} offen offset:1024 {W_FLAGS} lds {t}"])
    for i in range(2, 4):
        g.append([f"buffer_load_dwordx4 {vr(dX+i)}, {sX}, {sXoff} offen offset:{i*1024} {W_FLAGS} lds {t}"])
    g.append([f"s_add_u32 m0, {sXm0}, {XSLOT[slot] + 4096}", "s_nop 0",
              f"buffer_load_dwordx4 {vr(dX+4)}, {sX}, {sXoff} offen {W_FLAGS} lds {t}"])
    return g

def u_dma(e):
    g = []
    t = f";@tag=u{e}"
    if e <= 7:
        g.append([f"s_add_u32 m0, {sW4096}, {(e % 4) * 16384}", "s_nop 0",
                  f"buffer_load_dwordx4 {vr(dK)}, {sK}, {sKoff} offen {KV_FLAGS} lds {t}"])
        for i in range(1, 4):
            g.append([f"buffer_load_dwordx4 {vr(dK+i)}, {sK}, {sKoff} offen offset:{i*1024} {KV_FLAGS} lds {t}"])
        g[-1].append(f"s_add_u32 {sKoff}, {sKoff}, 16384")
    if e >= 1:
        g.append([f"s_add_u32 m0, {sW4096}, {65536 + ((e-1) % 4) * 16384}", "s_nop 0",
                  f"buffer_load_dwordx4 {vr(dV)}, {sV}, {sVoff} offen {KV_FLAGS} lds {t}"])
        for i in range(1, 4):
            g.append([f"buffer_load_dwordx4 {vr(dV+(i&1))}, {sV}, {sVoff} offen offset:{i*1024} {KV_FLAGS} lds {t}"])
        g[-1].append(f"s_add_u32 {sVoff}, {sVoff}, 16384")
    return g

def wo_dma(sigma, s):
    t = f";@tag=wo{s}"
    g = [[f"s_add_u32 {sT1}, {sRot}, {s}", f"s_and_b32 {sT1}, {sT1}, 3"],
         [f"s_mul_i32 {sT1}, {sT1}, {2*128*1152}", f"s_add_u32 {sWOoff}, {sT1}, {sWObase}"]]
    if sigma: g.append([f"s_add_u32 {sWOoff}, {sWOoff}, {128*1152}"])
    for i in range(9):
        pre = [f"s_add_u32 m0, {sWOm0}, {s*36864 + (i//4)*4096}", "s_nop 0"] if i % 4 == 0 else []
        off = f"offset:{(i%4)*1024} " if i % 4 else ""
        g.append(pre + [f"buffer_load_dwordx4 {vr(dWO+i)}, {sWO}, {sWOoff} offen {off}{W_FLAGS} lds {t}"])
    return g

def spread(groups, gaps, misc):
    n = len(groups)
    for k, grp in enumerate(groups):
        misc.setdefault(gaps[(k * len(gaps)) // n], []).extend(grp)

lab = [0]
def signal(val, line=None, own=None):
    lab[0] += 1
    line = line or sFlG; own = own or sJ
    return [f"s_cmp_lg_u32 {sW}, 0", f"s_cbranch_scc1 SIG{lab[0]}", "s_mov_b64 exec, 1", f"v_mov_b32 {vr(T+7)}, {val}",
            f"s_lshl_b32 s65, {own}, 2", f"s_add_u32 s65, s65, {line}",
            f"buffer_store_dword {vr(T+7)}, {vr(vZero)}, {sWS}, s65 offen sc1 ;@nocount", "s_mov_b64 exec, -1", f"SIG{lab[0]}:"]

def next_prefetch(nxt, which, sigma=0):
    if nxt == 'Q': return q_dma(which, f"q{which}")
    if nxt == 'A': return u_dma(which)
    if nxt == 'P': return wo_dma(sigma, which)
    return []

def q_phase(p, dq, dq8, nxt, sig, nsigma, wqstep, firstq):
    QF = [P, P + 24]
    def reads(i, s):
        f = QF[(4*i + s) & 1]
        xo = XSLOT[i % 3] - XBASE
        wo = WSLOT[i % 3] - WBASE + s * 4096
        r = [f"ds_read_b128 {vr(f,4)}, {vr(aX+s)} offset:{xo}"]
        def w(dl): return [f"ds_read_b64_tr_b16 {vr(f+8+4*dl+2*u,2)}, {vr(aWQ+dl)} offset:{wo+u*1024}" for u in range(2)]
        return r + w(0) + [f"ds_read_b128 {vr(f+4,4)}, {vr(aX8+s)} offset:{xo}"] + w(1) + w(2) + w(3)
    p("@waitvm q0")
    if firstq:
        lab[0] += 1
        p(f"""s_lshl_b32 {sT0}, {sG}, 2
        s_add_u32 {sT0}, {sT0}, {sJ}
        s_lshl_b32 {sT0}, {sT0}, 2
        s_add_u32 {sT0}, {sT0}, {sW}
        s_lshl_b32 {sT1}, {sBlk}, 3
        s_add_u32 {sT1}, {sT1}, {sB}
        s_lshl_b32 {sT1}, {sT1}, 2
        v_mov_b32 {vr(vInit)}, {sT1}
        s_cmp_lg_u32 {sT0}, 3
        s_cbranch_scc1 NOPUB{lab[0]}
        s_mov_b64 exec, 1
        v_mov_b32 {vr(T+7)}, 1
        global_store_dword {vr(vInit)}, {vr(T+7)}, {sDBG} sc1 ;@nocount
        s_mov_b64 exec, -1
        NOPUB{lab[0]}:""")
    p("s_barrier")
    p.ext(st(True))
    p.ext(reads(0, 0))
    mf = []; ds = {}; misc = {}
    for i in range(9):
        base = len(mf)
        for s in range(4):
            f = QF[(4*i + s) & 1]
            first = (i == 0 and s == 0)
            def mm(acc, a, b):
                mf.append(f"v_mfma_f32_32x32x16_bf16 {vr(acc,16)}, {vr(a,4)}, {vr(b,4)}, {'0' if first else vr(acc,16)}")
            g0 = len(mf)
            mm(O, f+8, f); mm(S, f+8, f+4); mm(O+16, f+12, f); mm(O+32, f+16, f); mm(O+48, f+20, f)
            stt = g0
            if s < 3: r = reads(i, s+1)
            elif i < 8:
                r = reads(i+1, 0); stt = g0 + 1
                tags = f"q{i+1}" + (",ost" if (sig and i == 0) else "")
                ds.setdefault(stt, []).extend([f"@waitvm {tags} lgkmcnt(0)", "s_barrier"] + st(True))
                if sig and i == 0: misc.setdefault(stt + 3, []).extend(signal(sig))
            else: r = []
            for k, (a, b) in enumerate(((0,3),(3,6),(6,8),(8,10))):
                ds.setdefault(stt + k, []).extend(r[a:b])
        gaps = list(range(base, base + 15))
        if i <= 6: spread(q_dma((i + 2) % 3, f"q{i+2}"), gaps, misc)
        else:
            g = next_prefetch(nxt, i - 7, nsigma)
            if i == 7:
                g = [[f"s_add_u32 {sWQbase}, {sWQbase}, {wqstep}" if wqstep > 0 else f"s_sub_u32 {sWQbase}, {sWQbase}, {-wqstep}"]] + g
            spread(g, gaps, misc)
    p.ext(weave(mf, ds, misc, []))
    p("s_nop 7")
    p.ext(st(True))
    for j in range(0, 16, 2):
        p(f"v_pk_mul_f32 {vr(S+j,2)}, {vr(S+j,2)}, s[4:5] op_sel_hi:[1,0]")
    for j in range(8):
        p(f"v_cvt_pk_bf16_f32 {vr(S+16+j)}, {vr(S+2*j)}, {vr(S+2*j+1)}")
    p("s_mov_b32 exec_lo, 0xffff")
    p("s_mov_b32 exec_hi, 0xffff")
    p(f"ds_write_b128 {vr(vQ8w)}, {vr(S+16,4)}")
    p(f"ds_write_b128 {vr(vQ8w)}, {vr(S+20,4)} offset:512")
    p("s_mov_b64 exec, -1")
    for j in range(0, 64, 2):
        p(f"v_pk_mul_f32 {vr(O+j,2)}, {vr(O+j,2)}, s[4:5] op_sel_hi:[1,0]")
    for j in range(32):
        p(f"v_cvt_pk_bf16_f32 {vr(O+j)}, {vr(O+2*j)}, {vr(O+2*j+1)}")
    for j in range(32):
        p(f"v_accvgpr_write_b32 {ar(dq+j)}, {vr(O+j)}")
    if firstq:
        lab[0] += 1
        p(f"""s_cmp_lg_u32 {sW}, 0
        s_cbranch_scc1 NORD{lab[0]}
        global_load_dword {vr(vInit+1)}, {vr(vInit)}, {sDBG} sc1 ;@nocount
        NORD{lab[0]}:""")
    p(f"v_add_u32 {vr(T)}, {Q8BUF}, {vr(vLin)}")
    p("@waitvm u0 lgkmcnt(0)" if nxt == 'A' else "s_waitcnt lgkmcnt(0)")
    p("s_barrier")
    for s in range(4):
        p(f"ds_read_b128 {ar(dq8+4*s,4)}, {vr(T)} offset:{s*1024}")

slow_code = []
def a_phase(p, inst, prev, nxt, sig, nsigma):
    LA = 5
    mf = []; frag = []; stepstart = {}; valu = []
    ds = {}; misc = {}
    def add(text_fn, reads_fn):
        f = POOL + 4 * (len(mf) % 8)
        mf.append(text_fn(f)); frag.append(reads_fn(f))
    def qk(t, sl):
        sb = S + 16 * (t & 1)
        c = vr(NEGM, 16) if sl == 0 else vr(sb, 16)
        off = ((t >> 1) % 4) * 16384 + (t & 1) * 8192
        add(lambda f: f"v_mfma_f32_32x32x16_bf16 {vr(sb,16)}, {vr(f,4)}, {ar(aQ+4*sl,4)}, {c}",
            lambda f: [f"ds_read_b128 {vr(f,4)}, {vr(aK+sl)} offset:{off}"])
    def pv(t, k):
        tp, D = k >> 2, k & 3
        c = "0" if (t == 0 and tp == 0) else vr(O + 16*D, 16)
        off = ((t >> 1) % 4) * 16384 + (t & 1) * 8192 + tp * 4096
        add(lambda f: f"v_mfma_f32_32x32x16_bf16 {vr(O+16*D,16)}, {vr(f,4)}, {vr(P+8*(t&1)+4*tp,4)}, {c}",
            lambda f: [f"ds_read_b64_tr_b16 {vr(f+2*u,2)}, {vr(aV+D)} offset:{off+u*2048}" for u in range(2)])
    def qk8(m, k):
        kt, sp = k >> 2, k & 3
        c = vr(NEGM8, 4) if sp == 0 else vr(S8 + 4*kt, 4)
        off = (m & 1) * 32768 + kt * 4096
        add(lambda f: f"v_mfma_f32_16x16x32_bf16 {vr(S8+4*kt,4)}, {vr(f,4)}, {ar(aQ8+4*sp,4)}, {c}",
            lambda f: [f"ds_read_b128 {vr(f,4)}, {vr(aK8+sp)} offset:{off}"])
    def pv8(m, D):
        c = "0" if m == 0 else ar(aO8 + 4*D, 4)
        off = (m & 1) * 32768
        add(lambda f: f"v_mfma_f32_16x16x32_bf16 {ar(aO8+4*D,4)}, {vr(f,4)}, {vr(P8,4)}, {c}",
            lambda f: [f"ds_read_b64_tr_b16 {vr(f+2*u,2)}, {vr(aV8+D)} offset:{off+u*4096}" for u in range(2)])
    for u in range(-1, 17):
        stepstart[u] = len(mf)
        seq = []
        for k in range(8):
            if 0 <= u + 1 <= 15: seq.append((qk, u + 1, k))
            if 0 <= u - 1 <= 15: seq.append((pv, u - 1, k))
        ex = []
        if u >= 1 and u % 4 == 1 and u <= 13: ex = [(qk8, u // 4, k) for k in range(8)]
        if u >= 4 and u % 4 == 0: ex = [(pv8, u // 4 - 1, k) for k in range(8)]
        merged = []
        for k, it in enumerate(seq):
            merged.append(it)
            if ex and k >= 1: merged.append(ex.pop(0))
        merged += ex
        for fn, a, b in merged: fn(a, b)
    stepstart[17] = len(mf)
    n = len(mf)
    bar = {}
    for e in range(1, 9):
        g = stepstart[2*e - 1] - LA
        bar[e] = g
        tags = f"u{e}" + (",ost" if (sig and e == 1) else "")
        ds.setdefault(g, []).extend([f"@waitvm {tags}", "s_barrier"] + st(True))
    bar[0] = -1; bar[9] = n - 2
    pre = []
    for i in range(n):
        if i - LA < 0: pre += frag[i]
        else: ds.setdefault(i - LA, []).extend(frag[i])
    for e in range(0, 9):
        gaps = list(range(bar[e] + 1, bar[e+1]))
        if e <= 6: spread(u_dma(e + 2), gaps, misc)
        elif nxt == 'P':
            if e == 8: spread(wo_dma(nsigma, 0), gaps, misc)
        elif nxt == 'A':
            g = u_dma(e - 7)
            if e == 7: g = [[f"s_add_u32 {sKoff}, {sPair}, 131072", f"s_add_u32 {sVoff}, {sPair}, 131072"]] + g
            spread(g, gaps, misc)
        else: spread(next_prefetch(nxt, e - 7), gaps, misc)
    def smx(sb, pb, l, cnt):
        o = []
        for j in range(0, cnt + 2, 2):
            if j < cnt: o += [f"v_exp_f32 {vr(sb+j)}, {vr(sb+j)}", f"v_exp_f32 {vr(sb+j+1)}, {vr(sb+j+1)}"]
            if j >= 2:
                o += [f"v_add_f32 {vr(l)}, {vr(l)}, {vr(sb+j-2)}", f"v_cvt_pk_bf16_f32 {vr(pb+j//2-1)}, {vr(sb+j-2)}, {vr(sb+j-1)}",
                      f"v_add_f32 {vr(l)}, {vr(l)}, {vr(sb+j-1)}"]
        return o
    for u in range(0, 16):
        lo = stepstart[u] + (2 if u == 0 else 1); hi = stepstart[u+1] - 1
        main = [(t, lo, hi) for t in smx(S + 16*(u&1), P + 8*(u&1), L, 16)]
        extra = []
        if u % 4 == 2: extra = smx(S8, P8, L8, 8)[:10]
        if u % 4 == 3: extra = smx(S8, P8, L8, 8)[10:]
        outq = []
        for k, it in enumerate(main):
            outq.append(it)
            if extra and k % 4 == 3: outq.append((extra.pop(0), lo, hi))
        outq += [(t, lo, hi) for t in extra]
        valu += outq
    for j in range(16): p(f"v_mov_b32 {vr(NEGM+j)}, 0")
    for j in range(4): p(f"v_mov_b32 {vr(NEGM8+j)}, 0")
    p(f"s_mov_b32 {sRetry}, 0")
    if prev != 'Q':
        p("@waitvm u0")
        p("s_barrier")
    p(f"ATT{inst}:")
    p(f"s_mov_b32 {sStage}, {sStage0}")
    p(f"v_mov_b32 {vr(L)}, 0")
    p(f"v_mov_b32 {vr(L8)}, 0")
    p.ext(pre)
    W = weave(mf, ds, misc, valu)
    if sig:
        k = W.index("s_barrier")
        lab[0] += 1
        W = W[:k+1] + [f"s_cmp_lg_u32 {sRetry}, 0", f"s_cbranch_scc1 SKP{lab[0]}"] + signal(sig) + [f"SKP{lab[0]-1}:"] + W[k+1:]
    p.ext(W)
    if nxt == 'P':
        for g in wo_dma(nsigma, 1): p.ext(g)
    p.ext(st(True))
    t = T
    mrg = 0 if nxt == 'Q' else 128*K
    p(f"""v_mov_b32 {vr(t)}, {vr(L)}
    v_mov_b32 {vr(t+1)}, {vr(L8)}
    s_lshl_b32 {sT1}, {sW4096}, 1
    s_add_u32 {sT1}, {sT1}, {mrg}
    v_permlane32_swap_b32 {vr(L)}, {vr(t)}
    v_permlane16_swap_b32 {vr(L8)}, {vr(t+1)}
    v_add_f32 {vr(L)}, {vr(L)}, {vr(t)}
    v_add_f32 {vr(L8)}, {vr(L8)}, {vr(t+1)}
    v_rcp_f32 {vr(t+2)}, {vr(L)}
    v_mov_b32 {vr(t+1)}, {vr(L8)}
    s_mov_b32 {sT0}, 0x4e800000
    s_mov_b32 {sT2}, 0x30800000
    v_permlane32_swap_b32 {vr(L8)}, {vr(t+1)}
    v_add_f32 {vr(L8)}, {vr(L8)}, {vr(t+1)}
    v_cmp_nge_f32 vcc, {sT0}, {vr(L)}
    v_cmp_nle_f32 s[64:65], {sT2}, {vr(L)}
    v_add_u32 {vr(t+3)}, {sT1}, {vr(vLin)}
    s_or_b64 s[64:65], vcc, s[64:65]
    v_cmp_nge_f32 vcc, {sT0}, {vr(L8)}
    s_lshr_b32 {sT1}, {sW4096}, 1
    s_add_u32 {sT1}, {sT1}, {mrg}
    s_or_b64 vcc, vcc, s[64:65]
    s_cselect_b32 {sT0}, 1, 0
    v_add_u32 {vr(t+4)}, {sT1}, {vr(vLin)}
    v_mov_b32 {vr(t+1)}, {sT0}""")
    for D in range(8):
        p(f"ds_write_b128 {vr(t+3)}, {ar(aO8+4*D,4)} offset:{D*1024}")
    p(f"ds_write_b32 {vr(vL8w)}, {vr(L8)}")
    p(f"ds_write_b32 {vr(vL8w)}, {vr(t+1)} offset:256")
    p(f"s_lshl_b32 {sT1}, {sW4096}, 1")
    p(f"s_add_u32 {sT1}, {sT1}, {sOst}")
    for D in range(4):
        o = O + 16 * D
        for j in range(0, 16, 2):
            p(f"v_pk_mul_f32 {vr(o+j,2)}, {vr(o+j,2)}, {vr(t+2,2)} op_sel_hi:[1,0]")
        for jj in range(2):
            d = S + 8 * D + 4 * jj
            for k, src in enumerate((4*jj, 4*jj+2, 8+4*jj, 8+4*jj+2)):
                p(f"v_cvt_pk_bf16_f32 {vr(d+k)}, {vr(o+src)}, {vr(o+src+1)}")
            p(f"buffer_store_dwordx4 {vr(d,4)}, {vr(vOst)}, {sWS}, {sT1} offen offset:{D*1024+jj*512} {OST} ;@tag=ost")
    if inst[1] == '0':
        lab[0] += 1
        p(f"""s_cmp_lg_u32 {sW}, 0
        s_cbranch_scc1 INITE{lab[0]}
        s_mov_b32 {sT1}, 0x20000
        INITL{lab[0]}:
        v_readfirstlane_b32 {sT0}, {vr(vInit+1)}
        s_nop 0
        s_cmp_lg_u32 {sT0}, 0
        s_cbranch_scc1 INITE{lab[0]}
        global_load_dword {vr(vInit+1)}, {vr(vInit)}, {sDBG} sc1 ;@nocount
        s_waitcnt vmcnt(0) ;@nocount
        s_sub_u32 {sT1}, {sT1}, 1
        s_cbranch_scc0 INITL{lab[0]}
        INITE{lab[0]}:""")
    p.ext(st(True))
    p("s_waitcnt lgkmcnt(0)")
    p("s_barrier")
    M = O
    for v in range(4):
        p(f"ds_read_b128 {vr(M+8*v,4)}, {vr(t+4)} offset:{v*8192}")
        p(f"ds_read_b128 {vr(M+8*v+4,4)}, {vr(t+4)} offset:{v*8192+1024}")
    p(f"ds_read_b128 {vr(P,4)}, {vr(vL8r)}")
    p(f"ds_read_b128 {vr(P+4,4)}, {vr(vL8r)} offset:256")
    p(f"""v_add_f32 {vr(P)}, {vr(P)}, {vr(P+1)}
    v_add_f32 {vr(P+2)}, {vr(P+2)}, {vr(P+3)}
    v_or_b32 {vr(P+4)}, {vr(P+4)}, {vr(P+5)}
    v_add_f32 {vr(P)}, {vr(P)}, {vr(P+2)}
    v_or3_b32 {vr(P+4)}, {vr(P+4)}, {vr(P+6)}, {vr(P+7)}
    v_cmp_nle_f32 vcc, {sT2}, {vr(P)}
    v_cmp_ne_u32 s[64:65], 0, {vr(P+4)}
    v_rcp_f32 {vr(P+2)}, {vr(P)}
    s_lshr_b32 {sT1}, {sW4096}, 2
    s_add_u32 {sT1}, {sT1}, {sOst}
    s_or_b64 vcc, vcc, s[64:65]
    s_cselect_b32 {sT0}, 1, 0
    s_cmp_gt_u32 {sT0}, {sRetry}
    s_cbranch_scc1 SLOW{inst}""")
    for j in range(8):
        p(f"v_add_f32 {vr(M+j)}, {vr(M+j)}, {vr(M+8+j)}")
        p(f"v_add_f32 {vr(M+16+j)}, {vr(M+16+j)}, {vr(M+24+j)}")
    for j in range(8): p(f"v_add_f32 {vr(M+j)}, {vr(M+j)}, {vr(M+16+j)}")
    for j in range(8): p(f"v_mul_f32 {vr(M+j)}, {vr(M+j)}, {vr(P+2)}")
    for j in range(4): p(f"v_cvt_pk_bf16_f32 {vr(M+j)}, {vr(M+2*j)}, {vr(M+2*j+1)}")
    p(f"""s_add_u32 {sT1}, {sT1}, 32768
    buffer_store_dwordx4 {vr(M,4)}, {vr(vLin)}, {sWS}, {sT1} offen {OST} ;@tag=ost
    s_add_u32 {sPair}, {sPair}, 131072
    s_add_u32 {sOst}, {sOst}, {OHEAD}""")
    if nxt != 'A':
        p(f"s_mov_b32 {sKoff}, {sPair}")
        p(f"s_mov_b32 {sVoff}, {sPair}")
    else:
        for j in range(48): p(f"v_accvgpr_mov_b32 {ar(aQ+j)}, {ar(aPark+j)}")
    q = Prog()
    F = POOL; ln = vr(vLane)
    t0, t1, t2, t3, t4 = [vr(T+i) for i in range(5)]
    q(f"""SLOW{inst}:
    s_waitcnt vmcnt(0) lgkmcnt(0)
    s_barrier
    s_mov_b32 {sRetry}, 1
    v_and_b32 {t0}, 31, {ln}
    v_lshrrev_b32 {t1}, 5, {ln}
    v_lshlrev_b32 {t1}, 4, {t1}
    v_lshl_add_u32 {t0}, {t0}, 8, {t1}
    v_and_b32 {t2}, 15, {ln}
    v_lshrrev_b32 {t1}, 4, {ln}
    v_lshlrev_b32 {t1}, 4, {t1}
    v_lshl_add_u32 {t2}, {t2}, 8, {t1}
    v_mov_b32 {t3}, 0xff800000
    v_mov_b32 {t4}, 0xff800000
    s_mov_b32 {sT0}, {sPair}
    s_mov_b32 {sT2}, 0
    SLOWL{inst}:""")
    for sl in range(8):
        q(f"""s_lshl_b32 {sT1}, {sW}, 1
        s_add_u32 {sT1}, {sT1}, {sl}
        s_and_b32 {sT1}, {sT1}, 7
        s_lshl_b32 {sT1}, {sT1}, 5
        s_add_u32 {sT1}, {sT1}, {sT0}
        buffer_load_dwordx4 {vr(F+4*sl,4)}, {t0}, {sK}, {sT1} offen""")
    q("s_waitcnt vmcnt(0)")
    for sl in range(8):
        q(f"v_mfma_f32_32x32x16_bf16 {vr(S,16)}, {vr(F+4*sl,4)}, {ar(aQ+4*sl,4)}, {'0' if sl == 0 else vr(S,16)}")
    q("s_nop 4")
    q(f"s_add_u32 {sT1}, {sT0}, 4096")
    for kt in range(2):
        for sp in range(4):
            q(f"buffer_load_dwordx4 {vr(F+16*kt+4*sp,4)}, {t2}, {sK}, {sT0 if kt == 0 else sT1} offen offset:{sp*64}")
    q("s_waitcnt vmcnt(0)")
    for kt in range(2):
        for sp in range(4):
            q(f"v_mfma_f32_16x16x32_bf16 {vr(S8+4*kt,4)}, {vr(F+16*kt+4*sp,4)}, {ar(aQ8+4*sp,4)}, {'0' if sp == 0 else vr(S8+4*kt,4)}")
    q("s_nop 15")
    for j in range(0, 16, 2): q(f"v_max3_f32 {t3}, {t3}, {vr(S+j)}, {vr(S+j+1)}")
    for j in range(0, 8, 2): q(f"v_max3_f32 {t4}, {t4}, {vr(S8+j)}, {vr(S8+j+1)}")
    q(f"""s_add_u32 {sT0}, {sT0}, 8192
    s_add_u32 {sT2}, {sT2}, 1
    s_cmp_lt_u32 {sT2}, 16
    s_cbranch_scc1 SLOWL{inst}
    v_mov_b32 {t0}, {t3}
    v_mov_b32 {t1}, {t4}
    s_nop 1
    v_permlane32_swap_b32 {t3}, {t0}
    v_permlane16_swap_b32 {t4}, {t1}
    v_max_f32 {t3}, {t3}, {t0}
    v_max_f32 {t4}, {t4}, {t1}
    v_mov_b32 {t1}, {t4}
    s_nop 1
    v_permlane32_swap_b32 {t4}, {t1}
    v_max_f32 {t4}, {t4}, {t1}""")
    for j in range(16): q(f"v_sub_f32 {vr(NEGM+j)}, 0, {t3}")
    for j in range(4): q(f"v_sub_f32 {vr(NEGM8+j)}, 0, {t4}")
    q(f"""s_mov_b32 {sKoff}, {sPair}
    s_mov_b32 {sVoff}, {sPair}""")
    for g in u_dma(0) + u_dma(1): q.ext(g)
    q(f"""s_waitcnt vmcnt(0)
    s_barrier
    s_branch ATT{inst}""")
    slow_code.extend(q.L)

def poll(p, line, val):
    lab[0] += 1; n = lab[0]
    p(f"""s_cmp_lg_u32 {sW}, 0
    s_cbranch_scc1 POLLE{n}
    s_mov_b32 {sT2}, 0x20000
    POLL{n}:
    buffer_load_dwordx4 {vr(T+2,4)}, {vr(vZero)}, {sWS}, {line} offen sc1 ;@nocount
    s_waitcnt vmcnt(0) ;@nocount
    v_min_u32 {vr(T+2)}, {vr(T+2)}, {vr(T+3)}
    v_min3_u32 {vr(T+2)}, {vr(T+2)}, {vr(T+4)}, {vr(T+5)}
    s_nop 0
    v_readfirstlane_b32 {sT0}, {vr(T+2)}
    s_nop 0
    s_cmp_ge_u32 {sT0}, {val}
    s_cbranch_scc1 POLLE{n}
    s_sleep {OPT.get("sleep", 4)}
    s_sub_u32 {sT2}, {sT2}, 1
    s_cbranch_scc0 POLL{n}
    POLLE{n}:""")

def p_phase(p, sigma, nxt, sig):
    aW = S
    vA, vB, vC = S + 9, S + 10, S + 11
    WP = O
    NP = 6; LAF = 4; LAO = 3
    ln = vr(vLane); t0, t1 = vr(T), vr(T+1)
    p(f"""v_lshrrev_b32 {t0}, 2, {ln}
    v_mul_u32_u24 {t0}, 288, {t0}
    v_and_b32 {t1}, 3, {ln}
    v_lshl_add_u32 {t0}, {t1}, 3, {t0}
    s_lshl_b32 {sT1}, {sW}, 1""")
    for i in range(9):
        p(f"""s_add_u32 {sT0}, {sT1}, {i}
        s_cmp_ge_u32 {sT0}, 9
        s_cselect_b32 {sT2}, 9, 0
        s_sub_u32 {sT0}, {sT0}, {sT2}
        s_lshl_b32 {sT0}, {sT0}, 5
        v_add_u32 {vr(aW+i)}, {sT0}, {t0}""")
    p(f"""s_lshl_b32 {sT0}, {sW4096}, 1
    v_add_u32 {vr(vA)}, {sT0}, {vr(vLin)}
    v_add_u32 {vr(vC)}, 32768, {vr(vLin)}
    v_add_u32 {vr(vB)}, 4096, {vr(vA)}""")
    p.ext(st(True))
    if sig:
        p("@waitvm ost")
        p("s_barrier")
        p.ext(signal(sig))
    p.ext(st(True))
    poll(p, sFlG, sigma + 1)
    p("@waitvm wo0 lgkmcnt(0)")
    p("s_barrier")
    p.ext(st(True))
    def oloads(k):
        s, ks = k >> 2, k & 3
        g = []
        if ks == 0:
            g.append([f"s_add_u32 {sT1}, {sRot}, {s}", f"s_and_b32 {sT1}, {sT1}, 3"])
            g.append([f"s_mul_i32 {sT1}, {sT1}, {2*OHEAD}", f"s_add_u32 {sOld}, {sT1}, {sObase}"])
            if sigma: g.append([f"s_add_u32 {sOld}, {sOld}, {OHEAD}"])
        for r, v in enumerate((vA, vB, vC)):
            g.append([f"buffer_load_dwordx4 {ar(aPark+12*(k%4)+4*r,4)}, {vr(v)}, {sWS}, {sOld} offen offset:{ks*1024} {OLD} ;@tag=o{k}"])
        return g
    def freads(F):
        k, i = divmod(F, 9)
        f = WP + 4 * (F % NP)
        off = (k % 7) * 9216
        return [f"ds_read_b64_tr_b16 {vr(f+2*u,2)}, {vr(aW+i)} offset:{off+u*4608}" for u in range(2)]
    for k in range(LAO):
        for g in oloads(k): p.ext(g)
    for F in range(LAF): p.ext(freads(F))
    first_st = st(True)
    mf = []; ds = {}; misc = {}; valu = []
    first_gap = {}; free = {}
    for k in range(16):
        free[k] = []
        for i in range(9):
            F = 9 * k + i
            f = WP + 4 * (F % NP)
            first_gap[F] = len(mf)
            for r in ([0, 1, 2] if i < 3 else [0, 1]):
                acc = aPacc + (4 * (2*i + r) if r < 2 else 72 + 4*i)
                c = "0" if (sigma == 0 and k == 0) else ar(acc, 4)
                mf.append(f"v_mfma_f32_16x16x32_bf16 {ar(acc,4)}, {vr(f,4)}, {ar(aPark+12*(k%4)+4*r,4)}, {c}")
                if r >= 1: free[k].append(len(mf) - 1)
                if r == 1 and i < 3: free[k].append(len(mf) - 1)
    for F in range(LAF, 144):
        g = first_gap[F - LAF]
        k, i = divmod(F, 9)
        if i == 0 and k % 4 == 0:
            ds.setdefault(g, []).extend([f"@waitvm wo{k//4}", "s_barrier"] + st(True))
        ds.setdefault(g, []).extend(freads(F))
        if k in (6, 13):
            misc.setdefault(g + 1, []).append(f"v_add_u32 {vr(aW+i)}, {7*9216}, {vr(aW+i)}")
    pf = {}
    for s in range(4):
        if s <= 1: g = wo_dma(sigma, s + 2)
        else: g = next_prefetch(nxt, s - 2, 1)
        for k in range(4): pf[4*s + k] = g[(k*len(g))//4:((k+1)*len(g))//4]
    for k in range(16):
        g = (oloads(k + LAO) if k + LAO < 16 else []) + pf[k]
        if g: spread(g, free[k][:-1], misc)
        if k < 15: misc.setdefault(free[k][-1], []).append(f"@waitvm o{k+1}")
    p("@waitvm o0")
    p.ext(first_st)
    p.ext(weave(mf, ds, misc, valu))

def f_phase(p):
    ln = vr(vLane); t0, t1 = vr(T), vr(T+1)
    p(f"""s_lshl_b32 {sT1}, {sBlk}, 3
    s_add_u32 {sT1}, {sT1}, {sB}
    s_lshl_b32 {sT1}, {sT1}, 2
    s_add_u32 {sT1}, {sT1}, {sJ}
    s_lshl_b32 {sT1}, {sT1}, 4
    s_add_u32 {sT1}, {sT1}, {sW}
    s_mul_i32 {sOld}, {sT1}, {24*1024}
    s_add_u32 {sOld}, {sOld}, {PART}
    s_mul_i32 {sT0}, {sG}, {4*24*1024}
    s_add_u32 {sT0}, {sT0}, {sOld}""")
    for t in range(21):
        p(f"buffer_store_dwordx4 {ar(aPacc+4*t,4)}, {vr(vLin)}, {sWS}, {sT0} offen offset:{(t%4)*1024} {OST} ;@tag=ost")
        if t % 4 == 3: p(f"s_add_u32 {sT0}, {sT0}, 4096")
    p(f"""s_mul_i32 {sT0}, {sG}, 6144
    s_add_u32 {sOld}, {sOld}, {sT0}
    v_and_b32 {t0}, 15, {ln}
    v_mul_u32_u24 {t0}, 2304, {t0}
    v_lshrrev_b32 {t1}, 4, {ln}
    v_lshl_add_u32 {vr(T+7)}, {t1}, 3, {t0}
    v_add_u32 {vr(S)}, 4096, {vr(vLin)}""")
    vOut = S + 1
    p(f"v_mov_b32 {vr(vOut)}, {vr(T+7)}")
    so = [sKoff, sVoff, sWQoff, sXoff, sStage, sXbase]
    for m in range(6):
        p(f"""s_mul_i32 {sT0}, {sG}, 6
        s_add_u32 {sT0}, {sT0}, {m}
        s_lshr_b32 {sT1}, {sT0}, 1
        s_and_b32 {sT2}, {sT0}, 1
        s_lshl_b32 {sT2}, {sT2}, 4
        s_lshl_b32 {sT3}, {sW}, 5
        s_add_u32 {sT2}, {sT2}, {sT3}
        s_sub_u32 {sT3}, {sT0}, 18
        s_cmp_ge_u32 {sT0}, 18
        s_cselect_b32 {sT1}, {sT3}, {sT1}
        s_cselect_b32 {sT2}, 128, {sT2}
        s_lshl_b32 {sT3}, {sW}, 1
        s_add_u32 {sT1}, {sT1}, {sT3}
        s_cmp_ge_u32 {sT1}, 9
        s_cselect_b32 {sT3}, 9, 0
        s_sub_u32 {sT1}, {sT1}, {sT3}
        s_mul_i32 {sT3}, {sB}, 144
        s_add_u32 {sT2}, {sT2}, {sT3}
        s_mul_i32 {sT2}, {sT2}, 2304
        s_lshl_b32 {sT1}, {sT1}, 5
        s_add_u32 {sT2}, {sT2}, {sT1}
        s_mul_i32 {sT1}, {sJ}, 288
        s_add_u32 {sT2}, {sT2}, {sT1}
        s_mul_i32 {sT1}, {sBlk}, 1152
        s_add_u32 {so[m]}, {sT2}, {sT1}
        s_cmp_eq_u32 {sW}, 3
        s_cselect_b32 {sT1}, 21, 20
        s_cmp_ge_u32 {sT0}, {sT1}
        s_cselect_b32 {so[m]}, 0x40000000, {so[m]}""")
    p.ext(st(True))
    p("@waitvm ost")
    p.ext(st(True))
    p("s_barrier")
    p.ext(st(True))
    p.ext(signal(1, sFlS, sG))
    poll(p, sFlS, 1)
    p("s_barrier")
    p.ext(st()); p.ext(st(True))
    for g in range(4):
        for m in range(6):
            d = (O + 16*m + 4*g) if m < 4 else (P + 16*(m-4) + 4*g)
            p(f"buffer_load_dwordx4 {vr(d,4)}, {vr(vLin) if m < 4 else vr(S)}, {sWS}, {sOld} offen offset:{(m%4)*1024} {OLD}")
        if g < 3: p(f"s_add_u32 {sOld}, {sOld}, {4*24*1024}")
    for m in range(6):
        d = (O + 16*m) if m < 4 else (P + 16*(m-4))
        for j in range(4):
            p(f"v_add_f32 {vr(d+j)}, {vr(d+j)}, {vr(d+4+j)}")
            p(f"v_add_f32 {vr(d+8+j)}, {vr(d+8+j)}, {vr(d+12+j)}")
        for j in range(4): p(f"v_add_f32 {vr(d+j)}, {vr(d+j)}, {vr(d+8+j)}")
        p(f"v_cvt_pk_bf16_f32 {vr(d)}, {vr(d)}, {vr(d+1)}")
        p(f"v_cvt_pk_bf16_f32 {vr(d+1)}, {vr(d+2)}, {vr(d+3)}")
        p(f"buffer_store_dwordx2 {vr(d,2)}, {vr(vOut)}, {sOUT}, {so[m]} offen")

def prologue(p):
    p(f"""s_cmp_ge_u32 s2, 256
    s_cbranch_scc1 K_END
    s_load_dwordx8 s[64:71], s[0:1], 0
    s_load_dwordx8 s[72:79], s[0:1], 40
    s_load_dwordx2 s[80:81], s[0:1], 32
    s_load_dwordx2 s[82:83], s[0:1], 72
    s_load_dwordx2 s[32:33], s[0:1], 80
    s_load_dwordx2 s[36:37], s[0:1], 88
    s_load_dwordx2 s[24:25], s[0:1], 96
    v_and_b32 {vr(vLane)}, 63, v0
    v_lshrrev_b32 v1, 6, v0
    s_and_b32 s3, s2, 7
    v_readfirstlane_b32 {sW}, v1
    s_lshr_b32 s4, s2, 3
    s_lshr_b32 {sBlk}, s3, 2
    s_and_b32 {sG}, s3, 3
    s_and_b32 {sB}, s4, 7
    s_lshr_b32 {sJ}, s4, 3
    s_lshl_b32 s5, {sJ}, 1
    s_lshl_b32 s3, {sG}, 3
    s_add_u32 s3, s3, s5
    s_add_u32 {sStage0}, s5, {sB}
    s_cmp_ge_u32 {sStage0}, 9
    s_cselect_b32 s5, 9, 0
    s_sub_u32 {sStage0}, {sStage0}, s5
    s_mov_b32 {sStage}, {sStage0}
    s_lshl_b32 {sW4096}, {sW}, 12
    s_mul_i32 {sXm0}, {sW}, 5120
    s_mul_i32 {sXbase}, {sB}, 165888
    s_and_b32 s5, {sB}, 1
    s_add_u32 s5, s5, s3
    s_lshl_b32 {sWQbase}, s5, 8
    s_lshl_b32 s5, {sB}, 5
    s_add_u32 s5, s5, s3
    s_lshl_b32 {sPair}, s5, 17
    s_lshl_b32 s6, {sBlk}, 8
    s_add_u32 s5, s5, s6
    s_mul_i32 {sOst}, s5, {OHEAD}
    s_mov_b32 s10, 1327104
    s_mov_b32 s11, 0x20000
    s_mov_b32 s14, 33554432
    s_mov_b32 s15, 0x20000
    s_mov_b32 s18, 33554432
    s_mov_b32 s19, 0x20000
    s_mov_b32 s22, 4718592
    s_mov_b32 s23, 0x20000
    s_mov_b32 s26, {WSSIZE}
    s_mov_b32 s27, 0x20000
    s_mov_b32 s30, 4718592
    s_mov_b32 s31, 0x20000
    s_mov_b32 s34, 2654208
    s_mov_b32 s35, 0x20000""")
    ln = vr(vLane)
    t0, t1, t2, t3, t4, t5 = [vr(T+i) for i in range(6)]
    l16, l4, r32, hh, cc, rr = vr(1), vr(2), vr(3), vr(4), vr(5), vr(6)
    g1, l7, l3 = vr(7), vr(8), vr(9)
    p(f"""v_and_b32 {l16}, 15, {ln}
    v_lshrrev_b32 {l4}, 4, {ln}
    v_and_b32 {l7}, 7, {ln}
    v_lshrrev_b32 {l3}, 3, {ln}
    v_lshlrev_b32 {t0}, 2, {l4}
    v_xor_b32 {t0}, {t0}, {l16}
    v_lshlrev_b32 {t0}, 4, {t0}
    s_lshl_b32 s3, {sW}, 4
    v_add_u32 {t1}, s3, {l4}
    v_lshl_add_u32 {vr(dWQ)}, {t1}, 13, {t0}""")
    for i in range(1, 4): p(f"v_add_u32 {vr(dWQ+i)}, {i*(32768-1024)}, {vr(dWQ)}")
    p(f"s_mul_i32 s3, {sW}, 5")
    p(f"v_mul_u32_u24 {t1}, 1152, {l3}")
    for i in range(5):
        p(f"""s_add_u32 s4, s3, {i}
        s_lshl_b32 s5, s4, 2
        s_mul_i32 s4, s4, 9216
        v_add_u32 {t0}, s5, {l4}
        v_and_b32 {t0}, 7, {t0}
        v_xor_b32 {t0}, {t0}, {l7}
        v_lshlrev_b32 {t0}, 4, {t0}
        s_sub_u32 s4, s4, {i*1024 if i < 4 else 0}
        v_add3_u32 {vr(dX+i)}, {t0}, {t1}, s4""")
    p(f"""s_waitcnt lgkmcnt(0)
    s_cmp_eq_u32 {sBlk}, 0
    s_cselect_b64 s[8:9], s[64:65], s[72:73]
    s_cselect_b64 s[12:13], s[66:67], s[74:75]
    s_cselect_b64 s[16:17], s[68:69], s[76:77]
    s_cselect_b64 s[20:21], s[70:71], s[78:79]
    s_cselect_b64 s[28:29], s[80:81], s[82:83]""")
    if STAMP: p(f"s_memtime s[{STB}:{STB+1}]\ns_memrealtime s[{STB+2}:{STB+3}]")
    p(f"""s_lshl_b32 s3, {sBlk}, 3
    s_add_u32 s3, s3, {sB}
    s_lshl_b32 s3, s3, 10
    s_add_u32 s3, s3, {FLAGS}
    s_lshl_b32 s5, {sG}, 7
    s_add_u32 {sFlG}, s3, s5
    s_lshl_b32 s5, {sJ}, 7
    s_add_u32 {sFlS}, s3, s5
    s_add_u32 {sFlS}, {sFlS}, 512
    v_mov_b32 {vr(vZero)}, 0
    s_lshl_b32 s5, {sG}, 2
    s_add_u32 s5, s5, {sJ}
    s_lshl_b32 s5, s5, 2
    s_add_u32 s5, s5, {sW}
    s_cmp_lg_u32 s5, 3
    s_cbranch_scc1 NOINIT
    v_mov_b32 v10, 0
    v_mov_b32 v11, 0
    v_mov_b32 v12, 0
    v_mov_b32 v13, 0
    v_lshlrev_b32 v14, 4, {ln}
    buffer_store_dwordx4 v[10:13], v14, {sWS}, s3 offen sc1 ;@nocount
    NOINIT:""")
    for g in q_dma(0, "q0"): p.ext(g)
    p(f"""v_and_b32 {r32}, 31, {ln}
    v_lshrrev_b32 {hh}, 5, {ln}
    v_and_b32 {cc}, 3, {ln}
    v_bfe_u32 {rr}, {ln}, 2, 2
    v_and_b32 {g1}, 1, {l4}
    v_lshlrev_b32 {vr(vLin)}, 4, {ln}""")
    for i in range(4):
        p(f"""v_add_u32 {t0}, {4*i}, {l4}
        v_xor_b32 {t0}, {t0}, {l16}
        v_lshlrev_b32 {t0}, 4, {t0}
        v_lshl_add_u32 {t0}, {l4}, 8, {t0}
        v_add_u32 {vr(dK+i)}, {sW4096}, {t0}""")
    p(f"""v_lshlrev_b32 {t0}, 2, {l4}
    v_xor_b32 {t0}, {t0}, {l16}
    v_lshlrev_b32 {t0}, 4, {t0}
    v_lshl_add_u32 {t0}, {l4}, 8, {t0}
    v_add_u32 {vr(dV)}, {sW4096}, {t0}
    v_xor_b32 {vr(dV+1)}, 32, {vr(dV)}""")
    p(f"""v_and_b32 {t0}, 1, {cc}
    v_lshl_add_u32 {t0}, {g1}, 1, {t0}
    v_lshlrev_b32 {t0}, 4, {t0}
    v_lshrrev_b32 {t1}, 1, {cc}
    v_lshl_add_u32 {t2}, {t1}, 3, {t0}
    v_lshl_add_u32 {t0}, {hh}, 3, {rr}
    v_lshl_add_u32 {t3}, {t0}, 8, {t2}
    v_add_u32 {t3}, {WBASE}, {t3}""")
    for dl in range(4):
        p(f"""s_add_u32 s3, {sW}, {dl}
        s_and_b32 s3, s3, 3
        v_xor_b32 {t0}, s3, {rr}
        v_lshl_add_u32 {vr(aWQ+dl)}, {t0}, 6, {t3}""")
    p(f"""v_xor_b32 {t0}, {g1}, {hh}
    v_lshlrev_b32 {t0}, 5, {t0}
    v_lshl_add_u32 {t2}, {cc}, 3, {t0}
    v_lshl_add_u32 {t0}, {hh}, 2, {rr}
    v_lshl_add_u32 {t3}, {t0}, 8, {t2}
    v_add_u32 {t3}, 65536, {t3}""")
    for D in range(4):
        p(f"""v_xor_b32 {t0}, {D}, {rr}
        v_lshl_add_u32 {vr(aV+D)}, {t0}, 6, {t3}""")
    p(f"""v_bfe_u32 {t1}, {r32}, 1, 3
    v_lshlrev_b32 {t3}, 7, {r32}
    v_add_u32 {t3}, {XBASE}, {t3}""")
    for s in range(4):
        p(f"""v_add_u32 {t0}, {2*s}, {hh}
        v_xor_b32 {t0}, {t0}, {t1}
        v_lshl_add_u32 {t0}, {t0}, 4, {t3}
        v_add_u32 {vr(aX+s)}, {sW4096}, {t0}
        v_add_u32 {vr(aX8+s)}, {128*128}, {t0}""")
    for g in q_dma(1, "q1"): p.ext(g)
    p(f"v_lshlrev_b32 {t3}, 8, {r32}")
    for sl in range(8):
        p(f"""s_lshl_b32 s3, {sW}, 1
        s_add_u32 s3, s3, {sl}
        s_and_b32 s3, s3, 7
        s_lshl_b32 s3, s3, 1
        v_add_u32 {t0}, s3, {hh}
        v_xor_b32 {t0}, {t0}, {l16}
        v_lshl_add_u32 {vr(aK+sl)}, {t0}, 4, {t3}""")
    p(f"""s_lshl_b32 s3, {sW}, 13
    v_lshlrev_b32 {t3}, 8, {l16}
    v_add_u32 {t3}, s3, {t3}""")
    for sp in range(4):
        p(f"""v_add_u32 {t0}, {4*sp}, {l4}
        v_xor_b32 {t0}, {t0}, {l16}
        v_lshl_add_u32 {vr(aK8+sp)}, {t0}, 4, {t3}""")
    p(f"""v_lshl_add_u32 {t0}, {l4}, 2, {rr}
    v_and_b32 {t1}, 1, {cc}
    v_lshlrev_b32 {t1}, 3, {t1}
    v_lshl_add_u32 {t3}, {t0}, 8, {t1}
    s_add_u32 s3, s3, 65536
    v_add_u32 {t3}, s3, {t3}
    v_lshlrev_b32 {t0}, 2, {rr}
    v_lshl_add_u32 {t0}, {g1}, 1, {t0}
    v_lshrrev_b32 {t1}, 1, {cc}
    v_xor_b32 {t2}, {t0}, {t1}""")
    for D in range(8):
        p(f"""v_xor_b32 {t0}, {2*D}, {t2}
        v_lshl_add_u32 {vr(aV8+D)}, {t0}, 4, {t3}""")
    p(f"""v_lshl_add_u32 {t0}, {hh}, 4, {r32}
    s_lshl_b32 s3, {sW}, 10
    s_add_u32 s3, s3, {Q8BUF}
    v_lshl_add_u32 {vr(vQ8w)}, {t0}, 4, s3
    v_lshlrev_b32 {t0}, 4, {l16}
    v_lshl_add_u32 {t1}, {g1}, 12, {t0}
    v_lshl_add_u32 {vr(vOst)}, {hh}, 8, {t1}
    v_add_u32 {vr(vL8r)}, {L8BUF}, {t0}
    s_lshl_b32 s3, {sW}, 2
    v_add_u32 {vr(vL8w)}, s3, {vr(vL8r)}
    s_mul_i32 s3, {sW}, {32*1152}
    s_movk_i32 s4, 3641""")
    for i in range(9):
        p(f"""v_add_u32 {t0}, {64*i}, {ln}
        v_mul_u32_u24 {t1}, s4, {t0}
        v_lshrrev_b32 {t1}, 16, {t1}
        v_mul_u32_u24 {t2}, {1152-288}, {t1}
        v_lshl_add_u32 {t0}, {t0}, 4, {t2}
        s_sub_u32 s5, s3, {(i%4)*1024}
        v_add_u32 {vr(dWO+i)}, s5, {t0}""")
    p(f"""s_mul_i32 {sWOm0}, {sW}, 9216
    s_mul_i32 {sWObase}, {sG}, {1024*1152}
    s_mul_i32 s3, {sJ}, 288
    s_add_u32 {sWObase}, {sWObase}, s3
    s_lshr_b32 s3, {sB}, 1
    s_add_u32 {sRot}, s3, {sJ}
    s_lshl_b32 s3, {sBlk}, 3
    s_add_u32 s3, s3, {sB}
    s_lshl_b32 s3, s3, 2
    s_add_u32 s3, s3, {sG}
    s_mul_i32 {sObase}, s3, {8*OHEAD}
    s_mov_b32 {sKoff}, {sPair}
    s_mov_b32 {sVoff}, {sPair}
    s_mov_b32 {sScale}, 0x3e0293ee""")

def program(pro, seq, sg):
    p = Prog(); p.L = list(pro)
    n0 = len(p.L)
    nstamp[0] = 2
    nq = na = np_ = 0
    sig = False
    for k, ph in enumerate(seq):
        nxt = seq[k+1] if k + 1 < len(seq) else ''
        prev = seq[k-1] if k else ''
        cur[0] = ph + str({'Q': nq, 'A': na, 'P': np_, 'F': 0}[ph])
        p.ext(st(True))
        if ph == 'Q':
            park = (sg == 1 and nq == 0)
            q_phase(p, aPark if park else aQ, aPark + 32 if park else aQ8, nxt, sig, np_, -256 if sg else 256, nq == 0)
            sig = False; nq += 1
        elif ph == 'A':
            a_phase(p, f"{sg}{na}", prev, nxt, sig, np_)
            na += 1; sig = na
        elif ph == 'P':
            p_phase(p, np_, nxt, sig)
            sig = False; np_ += 1
        else:
            p("s_nop 7")
            f_phase(p)
        p.ext(st()); p.ext(st(True))
    if STAMP:
        p(f"""s_waitcnt vmcnt(0)
        s_memtime s[{STB+32}:{STB+33}]
        s_memrealtime s[{STB+34}:{STB+35}]
        s_waitcnt lgkmcnt(0)
        s_lshl_b32 s3, s2, 2
        s_add_u32 s3, s3, {sW}
        s_lshl_b32 s3, s3, 7
        s_add_u32 s3, s3, {WSSIZE}
        s_mov_b32 s26, {WSSIZE + 262144}
        v_mov_b32 v20, 0
        s_mov_b64 exec, 1""")
        for k in range(18): p(f"v_mov_b32 v{k}, s{STB+2*k}")
        for k in range(0, 16, 4): p(f"buffer_store_dwordx4 v[{k}:{k+3}], v20, {sWS}, s3 offen offset:{4*k}")
        p(f"buffer_store_dwordx2 v[16:17], v20, {sWS}, s3 offen offset:64")
    p("s_endpgm")
    mark = "BODY_MARK:"
    L_ = p.L[:n0] + [mark] + p.L[n0:]
    L_ = merge_waits(auto_lgkm(auto_vm(L_)))
    bad = check_hazards(L_)
    k = L_.index(mark)
    return L_[:k], L_[k+1:], len(bad)

def main():
    pro = Prog(); prologue(pro)
    h0, b0, n0 = program(pro.L, OPT["seq0"], 0)
    h1, b1, n1 = program(pro.L, OPT["seq1"], 1)
    assert h0 == h1
    slow = auto_lgkm(slow_code)
    n2 = len(check_hazards(slow))
    body = h0 + [f"s_bitcmp1_b32 {sB}, 0", "s_cbranch_scc0 PROG0", "s_getpc_b64 s[64:65]", "PCREF:",
                 "s_add_u32 s64, s64, PROG1-PCREF", "s_addc_u32 s65, s65, 0", "s_setpc_b64 s[64:65]",
                 "K_END:", "s_endpgm", "PROG0:"] + b0[:] + [x for x in slow[:len(slow)//2]] + ["PROG1:"] + b1 + slow[len(slow)//2:]
    body = strip(body)
    kn = NAME + "_kernel"
    hdr = open('cdna_kernels/' + NAME + '.s.ref').read().split('; Override launch')[0]
    s = hdr + "; @launch grid=(256,1,1) block=(256,1,1) lds=163840\n"
    s += f'.amdgcn_target "amdgcn-amd-amdhsa--gfx950"\n.text\n.globl {kn}\n.p2align 8\n.type {kn},@function\n{kn}:\n' + "\n".join(body) + "\n"
    s += f""".section .rodata,"a"
.p2align 6
.amdhsa_kernel {kn}
  .amdhsa_next_free_vgpr {NV + NA}
  .amdhsa_next_free_sgpr 102
  .amdhsa_accum_offset {NV}
  .amdhsa_group_segment_fixed_size 0
  .amdhsa_kernarg_size 104
  .amdhsa_user_sgpr_count 2
  .amdhsa_user_sgpr_kernarg_segment_ptr 1
  .amdhsa_system_sgpr_workgroup_id_x 1
.end_amdhsa_kernel
"""
    fn = OPT.get("out", "cdna_kernels/" + NAME + ".s")
    open(fn, "w").write(s)
    print("written", fn, "lines", len(body), "bytes", len(s), "hazards:", n0 + n1 + n2)
main()
```

```python
import re

REG = re.compile(r'^(-|abs\()?([vas])(?:(\d+)|\[(\d+):(\d+)\])\)?$')
def regs_of(tok):
    tok = tok.strip()
    if tok in ('vcc', 'exec', 'm0', 'scc'): return [tok]
    if tok in ('vcc_lo', 'vcc_hi'): return ['vcc']
    if tok in ('exec_lo', 'exec_hi'): return ['exec']
    m = REG.match(tok)
    if not m: return []
    k = m.group(2)
    if m.group(3) is not None: return [f"{k}{m.group(3)}"]
    return [f"{k}{i}" for i in range(int(m.group(4)), int(m.group(5)) + 1)]

TRANS = ('v_exp_f32', 'v_log_f32', 'v_rcp_f32', 'v_rsq_f32', 'v_sqrt_f32', 'v_sin_f32', 'v_cos_f32')
class Ins:
    def __init__(self, text):
        self.text = text
        t = text.split(';')[0].strip()
        self.label = t.endswith(':') or t.startswith('.') or t == ''
        self.op = ''; self.dst = []; self.src = []; self.kind = 'none'
        if self.label: return
        parts = t.split(None, 1)
        op = self.op = parts[0]
        ops = []
        if len(parts) > 1:
            rest = parts[1]
            toks = re.split(r',\s*(?![^\[]*\])', rest)
            for tk in toks:
                sub = tk.strip().split()
                ops.append(sub[0] if sub else '')
            self.mods = ' '.join(toks[-1].strip().split()[1:]) if toks else ''
        else:
            self.mods = ''
        R = [regs_of(o) for o in ops]
        flat = lambda L: [r for x in L for r in x]
        if op.startswith('v_mfma'):
            self.kind = 'mfma'; self.dst = R[0]; self.src = flat(R[1:]); self.A = R[1]; self.B = R[2]; self.C = R[3]
            self.passes = 8 if '32x32' in op else 4
        elif op.startswith('ds_read') or op.startswith('ds_bpermute') or op.startswith('ds_swizzle'):
            self.kind = 'ds'; self.dst = R[0]; self.src = flat(R[1:])
        elif op.startswith('ds_'):
            self.kind = 'ds'; self.src = flat(R)
        elif op.startswith('buffer_load') or op.startswith('global_load'):
            self.kind = 'vmem'
            if ' lds' in ' ' + self.mods or '_lds_' in op:
                self.src = flat(R) + ['m0']; self.dma = True
            else:
                self.dst = R[0]; self.src = flat(R[1:])
        elif op.startswith('buffer_store') or op.startswith('global_store'):
            self.kind = 'vmem'; self.src = flat(R); self.store = True
            self.data = R[0] if op.startswith('buffer') else R[1]
        elif op.startswith('buffer_atomic') or op.startswith('global_atomic'):
            self.kind = 'vmem'; self.src = flat(R)
            if 'sc0' in self.mods: self.dst = R[0]
        elif op.startswith('buffer_') :
            self.kind = 'vmem'
        elif op.startswith('v_'):
            self.kind = 'valu'
            self.dst = list(R[0]); self.src = flat(R[1:])
            if op.startswith('v_permlane') or op.startswith('v_swap'):
                self.dst = R[0] + R[1]; self.src = R[0] + R[1]
            if op.startswith('v_fmac') or op.startswith('v_writelane'): self.src += R[0]
            if op.startswith('v_cmpx'): self.dst += ['exec']
            if '_co_' in op: self.dst += R[1]; self.src = flat(R[2:])
            if op.startswith('v_cndmask') and len(R) == 3: self.src += ['vcc']
        elif op.startswith('s_'):
            self.kind = 'salu'
            if op.startswith('s_load') or op.startswith('s_memtime') or op.startswith('s_memrealtime') or op.startswith('s_buffer_load'):
                self.kind = 'smem'; self.dst = R[0]; self.src = flat(R[1:])
            elif op.startswith(('s_cmp', 's_cbranch', 's_branch', 's_waitcnt', 's_barrier', 's_nop', 's_endpgm', 's_sleep', 's_setprio', 's_bitcmp')):
                self.src = flat(R)
            else:
                self.dst = list(R[0]) if R else []; self.src = flat(R[1:])
                if 'saveexec' in op: self.dst += ['exec']; self.src += ['exec']
        self.trans = op.replace('_e32', '').replace('_e64', '') in TRANS
    def states(self):
        if self.label: return 0
        if self.op == 's_nop': return int(self.text.split(';')[0].split()[1], 0) + 1
        return 1

def check_hazards(lines, verbose=True):
    ins = [Ins(l) for l in lines]
    probs = []
    n = len(ins)
    for i, p in enumerate(ins):
        if p.label: continue
        dist = 0
        for j in range(i + 1, n):
            c = ins[j]
            if c.label: continue
            need = 0
            pd = set(p.dst);
            cs = set(c.src); cd = set(c.dst)
            if p.kind == 'valu':
                vd = {r for r in pd if r[0] in 'va' and r not in ('vcc',)}
                sd = {r for r in pd if r[0] == 's' or r == 'vcc'}
                if c.kind == 'mfma' and vd & cs: need = max(need, 2)
                if c.op.startswith('v_permlane') and vd & cs: need = max(need, 2)
                if c.op.startswith(('v_readfirstlane', 'v_readlane')) and vd & cs: need = max(need, 1)
                if p.trans and c.kind in ('valu',) and not c.trans and vd & cs: need = max(need, 1)
                if p.trans and c.kind in ('mfma',) and vd & cs: need = max(need, 2)
                if c.kind == 'vmem' and sd & cs: need = max(need, 5)
                if c.kind == 'valu' and sd & cs: need = max(need, 2)
                if c.kind == 'salu' and sd & cs: need = max(need, 1)
                if 'exec' in pd and c.kind == 'mfma': need = max(need, 4)
                if 'dpp' in c.text and vd & cs: need = max(need, 2)
            if p.kind == 'mfma':
                big, mid, war = (12, 10, 7) if p.passes == 8 else (8, 6, 3)
                if c.kind == 'mfma':
                    if pd & (set(c.A) | set(c.B)): need = max(need, big)
                    if pd & set(c.C):
                        if not (c.C == p.dst and c.passes == p.passes): need = max(need, mid)
                    elif pd & cd and not (c.dst == p.dst and c.passes == p.passes): need = max(need, mid)
                elif c.kind in ('valu', 'ds', 'vmem'):
                    if pd & (cs | cd): need = max(need, big)
                    if c.kind == 'valu' and set(p.C) & cd: need = max(need, war)
            if p.kind == 'salu' and 'm0' in pd and getattr(c, 'dma', False): need = max(need, 1)
            if getattr(p, 'store', False) and len(p.data) >= 3 and set(p.data) & cd: need = max(need, 2 if c.kind == 'valu' else 1)
            if p.kind == 'ds' and p.op.startswith('ds_write') and c.kind == 'valu' and False: pass
            if need > dist:
                probs.append((i, j, need, dist, p.text, c.text))
            dist += c.states()
            if dist >= 20: break
    if verbose:
        for pr in probs: print("HAZARD need %d have %d:\n   %s\n   %s" % (pr[2], pr[3], pr[4].strip(), pr[5].strip()))
    return probs

def auto_lgkm(lines, group=2, maxcnt=15):
    ins = [Ins(l) for l in lines]
    out = []
    pend = []
    def need_n(c):
        touch = set(c.src) | set(c.dst)
        last = -1
        for k, d in enumerate(pend):
            if d & touch: last = k
        return last
    i = 0
    for i, c in enumerate(ins):
        if c.label:
            out.append(c.text); continue
        if c.op == 's_waitcnt':
            m = re.search(r'lgkmcnt\((\d+)\)', c.text)
            if m:
                N = int(m.group(1))
                if len(pend) > N: pend = pend[len(pend) - N:] if N else []
            out.append(c.text); continue
        last = need_n(c)
        if last >= 0:
            if c.kind == 'mfma' and group > 1:
                seen = 1
                for j in range(i + 1, len(ins)):
                    d = ins[j]
                    if d.label or d.op in ('s_barrier',) or d.op.startswith(('s_cbranch', 's_branch')): break
                    if d.kind == 'mfma':
                        l2 = need_n(d)
                        if l2 > last: last = l2
                        seen += 1
                        if seen >= group: break
            N = len(pend) - 1 - last
            assert N <= maxcnt, ("lgkmcnt overflow", N, c.text)
            out.append(f"    s_waitcnt lgkmcnt({N})")
            pend = pend[last + 1:]
        if c.kind == 'ds':
            pend.append(set(c.dst))
        elif c.kind == 'smem' and not c.op.startswith('s_mem'):
            pend.append(set(c.dst))
        if len(pend) > maxcnt + 1:
            pass
        out.append(c.text)
    return out

class Prog:
    def __init__(self): self.L = []
    def __call__(self, s):
        for l in s.split('\n'):
            if l.strip(): self.L.append('    ' + l.strip() if not l.strip().endswith(':') else l.strip())
    def ext(self, L):
        for l in L: self(l)

def weave(mf, gaps_ds, gaps_misc, valu, budget=None):
    out = []
    q = list(valu)
    n = len(mf)
    def cost(t):
        t = t.strip()
        if t.startswith('@'): return 1
        if t.split()[0] in TRANS: return 2
        if t.startswith('s_nop'): return int(t.split()[1]) + 1
        return 1
    carry = 0.0
    for i, m in enumerate(mf):
        out.append(m)
        cap = 6 if '32x32' in m else 2
        if budget: cap = budget(i, cap)
        used = 0
        for t in gaps_ds.get(i, []) + gaps_misc.get(i, []):
            out.append(t); used += cost(t)
        used += 0.5
        while q and q[0][1] <= i:
            c = cost(q[0][0])
            must = any(it[2] <= i for it in q)
            if used + c <= cap + carry or must:
                out.append(q.pop(0)[0]); used += c
            else: break
        carry = min(max(cap + carry - used, -1.0), 0.5)
    assert not q, ("valu left over", q[:3])
    return out


def auto_vm(lines, maxcnt=63):
    out = []
    pend = []
    marks = {}; count = [0]
    for l in lines:
        t = l.strip()
        if t.startswith('@waitvm'):
            parts = t.split(None, 2)
            tags = parts[1].split(',')
            extra = parts[2] if len(parts) > 2 else ''
            last = -1
            for k, (tg, d) in enumerate(pend):
                if tg in tags: last = k
            if last >= 0:
                N = len(pend) - 1 - last
                N = min(N, maxcnt)
                out.append(f"    s_waitcnt vmcnt({N}) {extra}".rstrip())
                pend = pend[len(pend) - N:] if N else []
            elif extra:
                out.append(f"    s_waitcnt {extra}")
            continue
        if t.startswith('@waitmark'):
            N = min(count[0] - marks[t.split()[1]], maxcnt)
            out.append(f"    s_waitcnt vmcnt({N}) ;@nocount")
            continue
        m = re.search(r'@mark=(\w+)', l)
        if m: marks[m.group(1)] = count[0]
        c = Ins(l)
        if c.label:
            out.append(l); continue
        if c.op == 's_waitcnt':
            m = re.search(r'vmcnt\((\d+)\)', l)
            if m and '@nocount' not in l:
                N = int(m.group(1))
                if len(pend) > N: pend = pend[len(pend) - N:] if N else []
            out.append(l); continue
        touch = set(c.src) | set(c.dst)
        last = -1
        for k, (tg, d) in enumerate(pend):
            if d & touch: last = k
        if last >= 0:
            N = min(len(pend) - 1 - last, maxcnt)
            out.append(f"    s_waitcnt vmcnt({N})")
            pend = pend[len(pend) - N:] if N else []
        if c.kind == 'vmem' and '@nocount' not in l:
            m = re.search(r'@tag=(\w+)', l)
            pend.append((m.group(1) if m else None, set() if '@dummy' in l else set(c.dst))); count[0] += 1
        out.append(l)
    return out

def merge_waits(lines):
    out = []
    for l in lines:
        t = l.strip()
        if t.startswith('s_waitcnt') and out and out[-1].strip().startswith('s_waitcnt') and '@' not in t and '@' not in out[-1]:
            a = dict(re.findall(r'(\w+)\((\d+)\)', out[-1])); b = dict(re.findall(r'(\w+)\((\d+)\)', t))
            for k, v in b.items(): a[k] = str(min(int(v), int(a.get(k, 99))))
            out[-1] = '    s_waitcnt ' + ' '.join(f"{k}({v})" for k, v in a.items())
        else: out.append(l)
    return out
def strip(lines):
    return [l.split(';')[0].strip() for l in lines if l.split(';')[0].strip()]


def fill_valu(skel, ops, cost_of=None):
    gaps = []; cur = None; head = []
    for l in skel:
        if l.strip().startswith('v_mfma'):
            cur = [l]; gaps.append(cur)
        elif cur is None: head.append(l)
        else: cur.append(l)
    def cost(t):
        t = t.strip()
        if t.endswith(':'): return 0
        if t.split()[0] in TRANS: return 8
        if t.startswith('s_nop'): return 4 * (int(t.split()[1]) + 1)
        return 4
    n = len(gaps)
    free = [(32 if '32x32' in g[0] else 16) - 8 - sum(cost(x) for x in g[1:]) for g in gaps]
    done = {}; seq = [0]
    out = list(head)
    pend = list(range(len(ops)))
    lastplaced = [None]
    for gi, g in enumerate(gaps):
        f = free[gi]
        placed = []
        def ready():
            r = []
            for k in pend:
                o = ops[k]
                if o['lo'] > gi: continue
                if any(d not in done for d in o['deps']): continue
                if lastplaced[0] in o['deps'] and cost(ops[lastplaced[0]]['text']) == 8 and done[lastplaced[0]] == gi: continue
                r.append(k)
            return r
        while True:
            r = ready()
            if not r:
                must = [k for k in pend if ops[k]['hi'] <= gi]
                if must:
                    placed.append('s_nop 0'); lastplaced[0] = None; f -= 4
                    if not ready(): raise Exception(("stuck", gi, ops[must[0]]))
                    continue
                break
            best = None
            behind = False
            for h in sorted(set(ops[k]['hi'] for k in pend if ops[k]['lo'] <= gi)):
                work = sum(cost(ops[k]['text']) for k in pend if ops[k]['hi'] <= h)
                room = max(f, 0) + sum(max(x, 0) for x in free[gi+1:h+1])
                if work > room: behind = True
            fit = [k for k in r if cost(ops[k]['text']) <= f]
            r.sort(key=lambda k: (ops[k]['hi'], ops[k]['pri']))
            fit.sort(key=lambda k: (ops[k]['hi'], ops[k]['pri']))
            must = any(ops[k]['hi'] <= gi for k in pend)
            if fit:
                k = fit[0]
            elif must or (behind and f > 0): k = r[0]
            else: break
            placed.append(ops[k]['text']); f -= cost(ops[k]['text']); done[k] = gi; pend.remove(k); lastplaced[0] = k
        body = g[1:]
        tail = []
        while body and body[-1].strip().startswith('s_waitcnt') and 'lgkmcnt' in body[-1] and 'vmcnt' not in body[-1]:
            tail.insert(0, body.pop())
        out += [g[0]] + body + placed + tail
        if tail or not placed: lastplaced[0] = None
        lastplaced[0] = None
    assert not pend, [ops[k] for k in pend[:3]]
    return out
```

```python
import sys
from asmlib import *

NAME = "concat_heads__mha_block_cached__mha_block_cached__near_ridge"
OPT = dict(kv="nt", w="", ost="sc1", old="sc1", smode="", warm="a", sleep="4", fsleep="1", m="2")
for a in sys.argv[1:]:
    if "=" in a:
        k, v = a.split("=", 1); OPT[k] = v.replace("+", " ")
KV_FLAGS, W_FLAGS, OST, OLD = OPT["kv"], OPT["w"], OPT["ost"], OPT["old"]
STAMP = "stamp" in sys.argv

def vr(b, n=1): return f"v{b}" if n == 1 else f"v[{b}:{b+n-1}]"
def ar(b, n=1): return f"a{b}" if n == 1 else f"a[{b}:{b+n-1}]"
K = 1024
OHEAD = 36864
WHEAD = 128 * 1152
OSIZE = 512 * OHEAD
PART = OSIZE
PSIZE = 64 * 64 * 3 * 1024
FLAGS = OSIZE + PSIZE
WSSIZE = FLAGS + 16384
sX, sK, sV, sWQ, sWS, sWO, sOUT, sDBG = "s[8:11]", "s[12:15]", "s[16:19]", "s[20:23]", "s[24:27]", "s[28:31]", "s[32:35]", "s[36:37]"
names = ("sW sW4096 sXm0 sPair sKoff sVoff sWQoff sXoff sStage sB sBlk sG sJ sXbase sWQbase sOst sRetry sStage0 sWOm0 sWOoff "
         "sOldA sOldB sObase sWObase sFlG sFlS sRb sRj").split()
for i, n in enumerate(names): globals()[n] = f"s{38+i}"
sScale = "s4"
sT0, sT1, sT2, sT3 = "s3", "s6", "s7", "s5"
sM = "s[66:67]"; sM0 = "s66"
STB = 68; NST = 17
O = 0; S = 64; P = 96; QR = 112; S8 = 144; P8 = 152; NEGM = 156; NEGM8 = 172; L = 176; L8 = 177; T = 178
aK = 186; aK8 = 194; aV = 198; aV8 = 202; aWQ = 210; aX = 214; aX8 = 218
dK = 222; dV = 226; dWQ = 228; dX = 232
vLin = 237; vOst = 238; vQ8w = 239; vL8w = 240; vL8r = 241; vLane = 242; vZero = 243; dWO = 244; vInit = 253
NV = 256
aQ8 = 0; aO8 = 16; aPark = 48; aPacc = 96; aPool = 180; NPOOL = 12
NA = 232
XSLOT = [64*K, 44*K, 84*K]; XBASE = 44*K
WSLOT = [128*K, 144*K, 112*K]; WBASE = 112*K
Q8BUF = 104*K; L8BUF = 84*K; MRG = 96*K; O8SLOT = 144*K

nstamp = [2]; cur = [""]
def st(detail=False):
    if not STAMP or nstamp[0] >= NST - 2: return []
    if detail != (OPT["smode"] != ""): return []
    if detail and cur[0] != OPT["smode"]: return []
    k = nstamp[0]; nstamp[0] += 1
    return [f"s_memtime s[{STB+2*k}:{STB+2*k+1}]"]
lab = [0]
def newlab():
    lab[0] += 1; return lab[0]

def q_dma(slot, tag):
    g = []
    t = f";@tag={tag}"
    g.append([f"s_mul_i32 {sWQoff}, {sStage}, {64*8192}", f"s_add_u32 {sWQoff}, {sWQoff}, {sWQbase}"])
    g.append([f"s_lshl_b32 {sXoff}, {sStage}, 7", f"s_add_u32 {sXoff}, {sXoff}, {sXbase}"])
    g.append([f"s_add_u32 m0, {sW4096}, {WSLOT[slot]}", f"s_add_u32 {sStage}, {sStage}, 1",
              f"buffer_load_dwordx4 {vr(dWQ)}, {sWQ}, {sWQoff} offen {W_FLAGS} lds {t}"])
    for i in range(1, 4):
        g.append([f"buffer_load_dwordx4 {vr(dWQ+i)}, {sWQ}, {sWQoff} offen offset:{i*1024} {W_FLAGS} lds {t}"])
    g.append([f"s_add_u32 m0, {sXm0}, {XSLOT[slot]}", f"s_cmp_eq_u32 {sStage}, 9", f"s_cselect_b32 {sStage}, 0, {sStage}",
              f"buffer_load_dwordx4 {vr(dX)}, {sX}, {sXoff} offen {W_FLAGS} lds {t}"])
    g.append([f"buffer_load_dwordx4 {vr(dX+1)}, {sX}, {sXoff} offen offset:1024 {W_FLAGS} lds {t}"])
    for i in range(2, 4):
        g.append([f"buffer_load_dwordx4 {vr(dX+i)}, {sX}, {sXoff} offen offset:{i*1024} {W_FLAGS} lds {t}"])
    g.append([f"s_add_u32 m0, {sXm0}, {XSLOT[slot] + 4096}", "s_nop 0",
              f"buffer_load_dwordx4 {vr(dX+4)}, {sX}, {sXoff} offen {W_FLAGS} lds {t}"])
    return g

def u_dma(e):
    g = []
    t = f";@tag=u{e}"
    if e <= 7:
        g.append([f"s_add_u32 m0, {sW4096}, {(e % 4) * 16384}", f"s_add_u32 {sKoff}, {sKoff}, 16384",
                  f"buffer_load_dwordx4 {vr(dK)}, {sK}, {sKoff} offen {KV_FLAGS} lds {t}"])
        for i in range(1, 4):
            g.append([f"buffer_load_dwordx4 {vr(dK+i)}, {sK}, {sKoff} offen offset:{i*1024} {KV_FLAGS} lds {t}"])
    if e >= 1:
        g.append([f"s_add_u32 m0, {sW4096}, {65536 + ((e-1) % 4) * 16384}", f"s_add_u32 {sVoff}, {sVoff}, 16384",
                  f"buffer_load_dwordx4 {vr(dV)}, {sV}, {sVoff} offen {KV_FLAGS} lds {t}"])
        for i in range(1, 4):
            g.append([f"buffer_load_dwordx4 {vr(dV+(i&1))}, {sV}, {sVoff} offen offset:{i*1024} {KV_FLAGS} lds {t}"])
    return g
def kv_reset(extra=0):
    return [f"s_add_u32 {sKoff}, {sPair}, {(extra - 16384) & 0xffffffff}", f"s_mov_b32 {sVoff}, {sKoff}"]

def stage_off(stg, dst, size, base):
    c, sg, idx, r = stg
    return [[f"s_xor_b32 {sT1}, {r}, {idx}", f"s_mul_i32 {sT1}, {sT1}, {4*size}"],
            [f"s_add_u32 {sT1}, {sT1}, {(2*c+sg)*size}", f"s_add_u32 {dst}, {sT1}, {base}"]]
def wo_dma(stg, n):
    t = f";@tag=wo{n}"
    g = stage_off(stg, sWOoff, WHEAD, sWObase)
    for i in range(9):
        pre = [f"s_add_u32 m0, {sWOm0}, {(n%4)*36864 + (i//4)*4096}", "s_nop 0"] if i % 4 == 0 else []
        off = f"offset:{(i%4)*1024} " if i % 4 else ""
        g.append(pre + [f"buffer_load_dwordx4 {vr(dWO+i)}, {sWO}, {sWOoff} offen {off}{W_FLAGS} lds {t}"])
    return g
def o8_dma(stg, n):
    g = stage_off(stg, sM0, OHEAD, sObase)
    g.append([f"s_lshr_b32 {sT1}, {sW4096}, 2", f"s_add_u32 {sM0}, {sM0}, {sT1}"])
    g.append([f"s_add_u32 m0, {sT1}, {O8SLOT + (n%4)*4096}", f"s_add_u32 {sM0}, {sM0}, 32768",
              f"buffer_load_dwordx4 {vr(vLin)}, {sWS}, {sM0} offen {OLD} lds ;@tag=wo{n}"])
    return g
def oloads(stages, k):
    n, ks = k >> 2, k & 3
    g = []
    if ks == 0:
        g += stage_off(stages[n], sOldA, OHEAD, sObase)
        g.append([f"s_lshl_b32 {sT1}, {sW4096}, 1", f"s_add_u32 {sOldA}, {sOldA}, {sT1}", f"s_add_u32 {sOldB}, {sOldA}, 4096"])
    for r, so in enumerate((sOldA, sOldB)):
        g.append([f"buffer_load_dwordx4 {ar(aPark+8*(k%4)+4*r,4)}, {vr(vLin)}, {sWS}, {so} offen offset:{ks*1024} {OLD} ;@tag=o{k}"])
    return g
LAO = 3
def p_pre3(stages):
    g = o8_dma(stages[0], 0)
    for k in range(LAO): g += oloads(stages, k)
    return g

def spread(groups, gaps, misc):
    n = len(groups)
    for k, grp in enumerate(groups):
        misc.setdefault(gaps[(k * len(gaps)) // n], []).extend(grp)

def signal(val, line=None, own=None):
    n = newlab()
    line = line or sFlG; own = own or sJ
    return [f"s_cmp_lg_u32 {sW}, 0", f"s_cbranch_scc1 SIG{n}", "s_mov_b64 exec, 1", f"v_mov_b32 {vr(T+7)}, {val}",
            f"s_lshl_b32 {sM0}, {own}, 2", f"s_add_u32 {sM0}, {sM0}, {line}",
            f"buffer_store_dword {vr(T+7)}, {vr(vZero)}, {sWS}, {sM0} offen sc1 ;@nocount", "s_mov_b64 exec, -1", f"SIG{n}:"]
def flag_load(line):
    n = newlab()
    return n, [f"s_cmp_lg_u32 {sW}, 0", f"s_cbranch_scc1 FL{n}",
               f"buffer_load_dwordx4 {vr(T+2,4)}, {vr(vZero)}, {sWS}, {line} offen sc1", f"FL{n}:"]
def flag_check(n, line, cls, val):
    m = newlab()
    if cls is None: mn = [f"v_min_u32 {vr(T+6)}, {vr(T+2)}, {vr(T+3)}", f"v_min3_u32 {vr(T+6)}, {vr(T+6)}, {vr(T+4)}, {vr(T+5)}"]
    else: mn = [f"v_min_u32 {vr(T+6)}, {vr(T+2+cls)}, {vr(T+4+cls)}"]
    ld = [f"buffer_load_dwordx4 {vr(T+2,4)}, {vr(vZero)}, {sWS}, {line} offen sc1 ;@nocount", "s_waitcnt vmcnt(0) ;@nocount"]
    o = [f"s_cmp_lg_u32 {sW}, 0", f"s_cbranch_scc1 CE{m}", f"s_mov_b32 {sT3}, 0x20000"]
    o += [f"@waitmark m{n}"] if n is not None else ld
    o += [f"CL{m}:"] + mn + ["s_nop 0", f"v_readfirstlane_b32 {sM0}, {vr(T+6)}", "s_nop 0", f"s_cmp_ge_u32 {sM0}, {val}",
          f"s_cbranch_scc1 CE{m}", f"s_sleep {OPT['sleep']}"] + ld + [f"s_sub_u32 {sT3}, {sT3}, 1", f"s_cbranch_scc0 CL{m}", f"CE{m}:"]
    return o

def q_phase(p, park, nxt, sig, wqstep, firstq, stages=None, chk=None, fillers=()):
    QF = [aPool, aPool + 24]
    dq8 = aPark + 32 if park else aQ8
    def reads(i, s):
        f = QF[(4*i + s) & 1]
        xo = XSLOT[i % 3] - XBASE
        wo = WSLOT[i % 3] - WBASE + s * 4096
        r = [f"ds_read_b128 {ar(f,4)}, {vr(aX+s)} offset:{xo}"]
        def w(dl): return [f"ds_read_b64_tr_b16 {ar(f+8+4*dl+2*u,2)}, {vr(aWQ+dl)} offset:{wo+u*1024}" for u in range(2)]
        return r + w(0) + [f"ds_read_b128 {ar(f+4,4)}, {vr(aX8+s)} offset:{xo}"] + w(1) + w(2) + w(3)
    p("@waitvm q0")
    if firstq:
        n = newlab()
        p(f"""s_lshl_b32 {sT0}, {sG}, 2
        s_add_u32 {sT0}, {sT0}, {sJ}
        s_lshl_b32 {sT0}, {sT0}, 2
        s_add_u32 {sT0}, {sT0}, {sW}
        s_cmp_lg_u32 {sT0}, 3
        s_cbranch_scc1 NOPUB{n}
        s_mov_b64 exec, 1
        v_mov_b32 {vr(T+7)}, 1
        global_store_dword {vr(vInit)}, {vr(T+7)}, {sDBG} sc1 ;@nocount
        s_mov_b64 exec, -1
        NOPUB{n}:""")
    p("s_barrier")
    p.ext(st(True))
    p.ext(reads(0, 0))
    mf = []; ds = {}; misc = {}
    fl = None
    for i in range(9):
        base = len(mf)
        if nxt == 'P' and i == 7:
            fl, code = flag_load(sFlG); misc.setdefault(base - 1, []).extend(code)
        for s in range(4):
            f = QF[(4*i + s) & 1]
            first = (i == 0 and s == 0)
            def mm(acc, a, b):
                mf.append(f"v_mfma_f32_32x32x16_bf16 {vr(acc,16)}, {ar(a,4)}, {ar(b,4)}, {'0' if first else vr(acc,16)}")
            g0 = len(mf)
            mm(O, f+8, f); mm(S, f+8, f+4); mm(O+16, f+12, f); mm(O+32, f+16, f); mm(O+48, f+20, f)
            stt = g0
            if s < 3: r = reads(i, s+1)
            elif i < 8:
                r = reads(i+1, 0); stt = g0 + 1
                tags = f"q{i+1}" + (",ost" if (sig and i == 0) else "")
                pre = flag_check(fl, sFlG, *chk) if (nxt == 'P' and i == 7) else []
                ds.setdefault(stt, []).extend(pre + [f"@waitvm {tags} lgkmcnt(0)", "s_barrier"] + st(True))
                if sig and i == 0: misc.setdefault(stt + 3, []).extend(signal(sig))
            else: r = []
            for k, (a, b) in enumerate(((0,3),(3,6),(6,8),(8,10))):
                ds.setdefault(stt + k, []).extend(r[a:b])
        gaps = list(range(base, base + 15))
        if i <= 6: g = q_dma((i + 2) % 3, f"q{i+2}")
        elif nxt == 'Q': g = q_dma(i - 7, f"q{i-7}")
        elif nxt == 'A': g = u_dma(i - 7)
        else:
            g = wo_dma(stages[0], 0) if i == 7 else p_pre3(stages) + wo_dma(stages[1], 1)
            if i == 8: gaps = list(range(base, base + 20))
        if i == 7: g = [[f"s_add_u32 {sWQbase}, {sWQbase}, {wqstep & 0xffffffff}"]] + g
        spread(g, gaps, misc)
    p.ext(weave(mf, ds, misc, [(t, 0, 138) for t in fillers]))
    p("s_nop 7")
    p.ext(st(True))
    for j in range(0, 16, 2):
        p(f"v_pk_mul_f32 {vr(S+j,2)}, {vr(S+j,2)}, s[4:5] op_sel_hi:[1,0]")
    for j in range(8):
        p(f"v_cvt_pk_bf16_f32 {vr(S+16+j)}, {vr(S+2*j)}, {vr(S+2*j+1)}")
    p("s_mov_b32 exec_lo, 0xffff")
    p("s_mov_b32 exec_hi, 0xffff")
    p(f"ds_write_b128 {vr(vQ8w)}, {vr(S+16,4)}")
    p(f"ds_write_b128 {vr(vQ8w)}, {vr(S+20,4)} offset:512")
    p("s_mov_b64 exec, -1")
    for j in range(0, 64, 2):
        p(f"v_pk_mul_f32 {vr(O+j,2)}, {vr(O+j,2)}, s[4:5] op_sel_hi:[1,0]")
    for j in range(32):
        p(f"v_cvt_pk_bf16_f32 {vr(QR+j)}, {vr(O+2*j)}, {vr(O+2*j+1)}")
    if park:
        for j in range(32): p(f"v_accvgpr_write_b32 {ar(aPark+j)}, {vr(QR+j)}")
    if firstq:
        n = newlab()
        p(f"""s_cmp_lg_u32 {sW}, 0
        s_cbranch_scc1 NORD{n}
        global_load_dword {vr(vInit+1)}, {vr(vInit)}, {sDBG} sc1 ;@nocount
        NORD{n}:""")
    p(f"v_add_u32 {vr(T)}, {Q8BUF}, {vr(vLin)}")
    p("@waitvm u0 lgkmcnt(0)" if nxt == 'A' else "s_waitcnt lgkmcnt(0)")
    p("s_barrier")
    for s in range(4):
        p(f"ds_read_b128 {ar(dq8+4*s,4)}, {vr(T)} offset:{s*1024}")

slow_code = []
def a_phase(p, inst, prev, nxt, sig, stages=None, chk=None, extra=None):
    LA = int(OPT.get('la', 9)); GRP = int(OPT.get('grp', 3))
    mf = []; frag = []; stepstart = {}; qk8end = {}
    ds = {}; misc = {}
    def add(text_fn, reads_fn):
        f = aPool + 4 * (len(mf) % NPOOL)
        mf.append(text_fn(f)); frag.append(reads_fn(f))
    def qk(t, sl):
        sb = S + 16 * (t & 1)
        c = vr(NEGM, 16) if sl == 0 else vr(sb, 16)
        off = ((t >> 1) % 4) * 16384 + (t & 1) * 8192
        add(lambda f: f"v_mfma_f32_32x32x16_bf16 {vr(sb,16)}, {ar(f,4)}, {vr(QR+4*sl,4)}, {c}",
            lambda f: [f"ds_read_b128 {ar(f,4)}, {vr(aK+sl)} offset:{off}"])
    def pv(t, k):
        tp, D = k >> 2, k & 3
        c = "0" if (t == 0 and tp == 0) else vr(O + 16*D, 16)
        off = ((t >> 1) % 4) * 16384 + (t & 1) * 8192 + tp * 4096
        add(lambda f: f"v_mfma_f32_32x32x16_bf16 {vr(O+16*D,16)}, {ar(f,4)}, {vr(P+8*(t&1)+4*tp,4)}, {c}",
            lambda f: [f"ds_read_b64_tr_b16 {ar(f+2*u,2)}, {vr(aV+D)} offset:{off+u*2048}" for u in range(2)])
    def qk8(m, k):
        kt, sp = k >> 2, k & 3
        c = vr(NEGM8, 4) if sp == 0 else vr(S8 + 4*kt, 4)
        off = (m & 1) * 32768 + kt * 4096
        add(lambda f: f"v_mfma_f32_16x16x32_bf16 {vr(S8+4*kt,4)}, {ar(f,4)}, {ar(aQ8+4*sp,4)}, {c}",
            lambda f: [f"ds_read_b128 {ar(f,4)}, {vr(aK8+sp)} offset:{off}"])
    def pv8(m, D):
        c = "0" if m == 0 else ar(aO8 + 4*D, 4)
        off = (m & 1) * 32768
        add(lambda f: f"v_mfma_f32_16x16x32_bf16 {ar(aO8+4*D,4)}, {ar(f,4)}, {vr(P8,4)}, {c}",
            lambda f: [f"ds_read_b64_tr_b16 {ar(f+2*u,2)}, {vr(aV8+D)} offset:{off+u*4096}" for u in range(2)])
    for u in range(-1, 17):
        stepstart[u] = len(mf)
        seq = []
        for k in range(9):
            if 0 <= u + 1 <= 15 and k < 8: seq.append((qk, u + 1, k))
            if 0 <= u - 1 <= 15 and k >= 1: seq.append((pv, u - 1, k - 1))
        ex = []
        if u >= 1 and u % 4 == 1 and u <= 13: ex = [(qk8, u // 4, k) for k in range(8)]
        if u >= 4 and u % 4 == 0: ex = [(pv8, u // 4 - 1, k) for k in range(8)]
        merged = []
        for k, it in enumerate(seq):
            merged.append(it)
            if ex and k >= (0 if u == 16 else 1): merged.append(ex.pop(0))
        merged += ex
        for fn, a, b in merged:
            if fn is qk8: qk8end[a] = len(mf)
            fn(a, b)
    stepstart[17] = len(mf)
    n = len(mf)
    bar = {}
    fl = None
    for e in range(1, 9):
        g = stepstart[2*e - 1] - LA
        bar[e] = g
        tags = f"u{e}" + (",ost" if (sig and e == 1) else "")
        pre = []
        if nxt == 'P' and e == 7:
            fl, code = flag_load(sFlG); misc.setdefault(g + 1, []).extend(code)
        if nxt == 'P' and e == 8: pre = flag_check(fl, sFlG, *chk)
        ds.setdefault(g, []).extend(pre + [f"@waitvm {tags}" + (" lgkmcnt(4)" if e == 8 else ""), "s_barrier"] + st(True))
    bar[0] = -1; bar[9] = n - 2
    pre = []
    for i in range(n):
        if i - LA < 0: pre += frag[i]
        else: ds.setdefault(i - LA, []).extend(frag[i])
    ds.setdefault(n - 4, []).extend(["s_waitcnt lgkmcnt(0)", "s_barrier"])
    for e in range(0, 9):
        gaps = list(range(bar[e] + 1, bar[e+1]))
        if e <= 6: g = u_dma(e + 2)
        elif nxt == 'P': g = wo_dma(stages[0], 0) + p_pre3(stages) if e == 8 else []
        elif nxt == 'A': g = ([kv_reset(131072)] if e == 7 else []) + u_dma(e - 7)
        else: g = q_dma(e - 7, f"q{e-7}")
        if extra and e in extra: g = g + extra[e]
        if g: spread(g, gaps, misc)
    ops = []
    def smx(sb, pb, l, cnt, lo, hi):
        b = len(ops)
        for j in range(cnt): ops.append(dict(text=f"v_exp_f32 {vr(sb+j)}, {vr(sb+j)}", lo=lo, hi=hi, deps=[], pri=j))
        for j in range(cnt): ops.append(dict(text=f"v_add_f32 {vr(l)}, {vr(l)}, {vr(sb+j)}", lo=lo, hi=hi, deps=[b+j], pri=j+2.5))
        for j in range(0, cnt, 2):
            ops.append(dict(text=f"v_cvt_pk_bf16_f32 {vr(pb+j//2)}, {vr(sb+j)}, {vr(sb+j+1)}", lo=lo, hi=hi, deps=[b+j, b+j+1], pri=j+2.4))
    for u in range(0, 16):
        smx(S + 16*(u&1), P + 8*(u&1), L, 16, stepstart[u] + (3 if u == 0 else int(OPT.get('lo', 0))), stepstart[u+1] - 1)
        if u % 4 == 1: smx(S8, P8, L8, 8, qk8end[u//4] + 3, stepstart[u+3] - 1)
    for j in range(16): p(f"v_mov_b32 {vr(NEGM+j)}, 0")
    for j in range(4): p(f"v_mov_b32 {vr(NEGM8+j)}, 0")
    p(f"s_mov_b32 {sRetry}, 0")
    if prev != 'Q':
        p("@waitvm u0")
        p("s_barrier")
    if prev == 'P2':
        for g in u_dma(1)[4:]: p.ext(g)
    p(f"ATT{inst}:")
    p(f"s_mov_b32 {sStage}, {sStage0}")
    p(f"v_mov_b32 {vr(L)}, 0")
    p(f"v_mov_b32 {vr(L8)}, 0")
    W = fill_valu(auto_lgkm(pre + weave(mf, ds, misc, []), group=GRP), ops)
    W = [x.strip() for x in W]
    if sig:
        k = W.index("s_barrier")
        m = newlab()
        W = W[:k+1] + [f"s_cmp_lg_u32 {sRetry}, 0", f"s_cbranch_scc1 SKP{m}"] + signal(sig) + [f"SKP{m}:"] + W[k+1:]
    p.ext(W)
    if nxt == 'P':
        for g in wo_dma(stages[1], 1): p.ext(g)
    p.ext(st(True))
    t = T
    p(f"""v_mov_b32 {vr(t)}, {vr(L)}
    v_mov_b32 {vr(t+1)}, {vr(L8)}
    s_lshl_b32 {sT1}, {sW4096}, 1
    s_add_u32 {sT1}, {sT1}, {MRG}
    v_permlane32_swap_b32 {vr(L)}, {vr(t)}
    v_permlane16_swap_b32 {vr(L8)}, {vr(t+1)}
    v_add_f32 {vr(L)}, {vr(L)}, {vr(t)}
    v_add_f32 {vr(L8)}, {vr(L8)}, {vr(t+1)}
    v_rcp_f32 {vr(t+2)}, {vr(L)}
    v_mov_b32 {vr(t+1)}, {vr(L8)}
    s_mov_b32 {sT0}, 0x4e800000
    s_mov_b32 {sT2}, 0x30800000
    v_permlane32_swap_b32 {vr(L8)}, {vr(t+1)}
    v_add_f32 {vr(L8)}, {vr(L8)}, {vr(t+1)}
    v_cmp_nge_f32 vcc, {sT0}, {vr(L)}
    v_cmp_nle_f32 {sM}, {sT2}, {vr(L)}
    v_add_u32 {vr(t+3)}, {sT1}, {vr(vLin)}
    s_or_b64 {sM}, vcc, {sM}
    v_cmp_nge_f32 vcc, {sT0}, {vr(L8)}
    s_lshr_b32 {sT1}, {sW4096}, 1
    s_add_u32 {sT1}, {sT1}, {MRG}
    s_or_b64 vcc, vcc, {sM}
    s_cselect_b32 {sT0}, 1, 0
    v_add_u32 {vr(t+4)}, {sT1}, {vr(vLin)}
    v_mov_b32 {vr(t+1)}, {sT0}""")
    for D in range(8):
        p(f"ds_write_b128 {vr(t+3)}, {ar(aO8+4*D,4)} offset:{D*1024}")
    p(f"ds_write_b32 {vr(vL8w)}, {vr(L8)}")
    p(f"ds_write_b32 {vr(vL8w)}, {vr(t+1)} offset:256")
    p(f"s_lshl_b32 {sWQoff}, {sW4096}, 1")
    p(f"s_add_u32 {sWQoff}, {sWQoff}, {sOst}")
    def norm(D):
        o = O + 16 * D
        for j in range(0, 16, 2):
            p(f"v_pk_mul_f32 {vr(o+j,2)}, {vr(o+j,2)}, {vr(t+2,2)} op_sel_hi:[1,0]")
        for jj in range(2):
            d = S + 8 * D + 4 * jj
            for k, src in enumerate((4*jj, 4*jj+2, 8+4*jj, 8+4*jj+2)):
                p(f"v_cvt_pk_bf16_f32 {vr(d+k)}, {vr(o+src)}, {vr(o+src+1)}")
            p(f"buffer_store_dwordx4 {vr(d,4)}, {vr(vOst)}, {sWS}, {sWQoff} offen offset:{D*1024+jj*512} {OST} ;@tag=ost")
    norm(0); norm(1)
    if inst[1] == '0':
        m = newlab()
        p(f"""s_cmp_lg_u32 {sW}, 0
        s_cbranch_scc1 INITE{m}
        s_mov_b32 {sT1}, 0x20000
        INITL{m}:
        v_readfirstlane_b32 {sT0}, {vr(vInit+1)}
        s_nop 0
        s_cmp_lg_u32 {sT0}, 0
        s_cbranch_scc1 INITE{m}
        global_load_dword {vr(vInit+1)}, {vr(vInit)}, {sDBG} sc1 ;@nocount
        s_waitcnt vmcnt(0) ;@nocount
        s_sub_u32 {sT1}, {sT1}, 1
        s_cbranch_scc0 INITL{m}
        INITE{m}:""")
    p.ext(st(True))
    p("s_waitcnt lgkmcnt(0)")
    p("s_barrier")
    M = O
    for v in range(4):
        p(f"ds_read_b128 {vr(M+8*v,4)}, {vr(t+4)} offset:{v*8192}")
        p(f"ds_read_b128 {vr(M+8*v+4,4)}, {vr(t+4)} offset:{v*8192+1024}")
    p(f"ds_read_b128 {vr(P,4)}, {vr(vL8r)}")
    p(f"ds_read_b128 {vr(P+4,4)}, {vr(vL8r)} offset:256")
    norm(2); norm(3)
    p(f"""v_add_f32 {vr(P)}, {vr(P)}, {vr(P+1)}
    v_add_f32 {vr(P+2)}, {vr(P+2)}, {vr(P+3)}
    v_or_b32 {vr(P+4)}, {vr(P+4)}, {vr(P+5)}
    v_add_f32 {vr(P)}, {vr(P)}, {vr(P+2)}
    v_or3_b32 {vr(P+4)}, {vr(P+4)}, {vr(P+6)}, {vr(P+7)}
    v_cmp_nle_f32 vcc, {sT2}, {vr(P)}
    v_cmp_ne_u32 {sM}, 0, {vr(P+4)}
    v_rcp_f32 {vr(P+2)}, {vr(P)}
    s_lshr_b32 {sT1}, {sW4096}, 2
    s_add_u32 {sT1}, {sT1}, {sOst}
    s_or_b64 vcc, vcc, {sM}
    s_cselect_b32 {sT0}, 1, 0
    s_cmp_gt_u32 {sT0}, {sRetry}
    s_cbranch_scc1 SLOW{inst}""")
    for j in range(8):
        p(f"v_add_f32 {vr(M+j)}, {vr(M+j)}, {vr(M+8+j)}")
        p(f"v_add_f32 {vr(M+16+j)}, {vr(M+16+j)}, {vr(M+24+j)}")
    for j in range(8): p(f"v_add_f32 {vr(M+j)}, {vr(M+j)}, {vr(M+16+j)}")
    for j in range(8): p(f"v_mul_f32 {vr(M+j)}, {vr(M+j)}, {vr(P+2)}")
    for j in range(4): p(f"v_cvt_pk_bf16_f32 {vr(M+j)}, {vr(M+2*j)}, {vr(M+2*j+1)}")
    p(f"""s_add_u32 {sT1}, {sT1}, 32768
    buffer_store_dwordx4 {vr(M,4)}, {vr(vLin)}, {sWS}, {sT1} offen {OST} ;@tag=ost
    s_add_u32 {sPair}, {sPair}, 131072
    s_add_u32 {sOst}, {sOst}, {OHEAD}""")
    if nxt != 'A': p.ext(kv_reset())
    else:
        for j in range(32): p(f"v_accvgpr_read_b32 {vr(QR+j)}, {ar(aPark+j)}")
        for j in range(16): p(f"v_accvgpr_mov_b32 {ar(aQ8+j)}, {ar(aPark+32+j)}")
    q = Prog()
    F = O; ln = vr(vLane)
    t0, t1, t2, t3, t4 = [vr(T+i) for i in range(5)]
    q(f"""SLOW{inst}:
    s_waitcnt vmcnt(0) lgkmcnt(0)
    s_barrier
    s_mov_b32 {sRetry}, 1
    v_and_b32 {t0}, 31, {ln}
    v_lshrrev_b32 {t1}, 5, {ln}
    v_lshlrev_b32 {t1}, 4, {t1}
    v_lshl_add_u32 {t0}, {t0}, 8, {t1}
    v_and_b32 {t2}, 15, {ln}
    v_lshrrev_b32 {t1}, 4, {ln}
    v_lshlrev_b32 {t1}, 4, {t1}
    v_lshl_add_u32 {t2}, {t2}, 8, {t1}
    v_mov_b32 {t3}, 0xff800000
    v_mov_b32 {t4}, 0xff800000
    s_mov_b32 {sT0}, {sPair}
    s_mov_b32 {sT2}, 0
    SLOWL{inst}:""")
    for sl in range(8):
        q(f"""s_lshl_b32 {sT1}, {sW}, 1
        s_add_u32 {sT1}, {sT1}, {sl}
        s_and_b32 {sT1}, {sT1}, 7
        s_lshl_b32 {sT1}, {sT1}, 5
        s_add_u32 {sT1}, {sT1}, {sT0}
        buffer_load_dwordx4 {vr(F+4*sl,4)}, {t0}, {sK}, {sT1} offen""")
    q("s_waitcnt vmcnt(0)")
    for sl in range(8):
        q(f"v_mfma_f32_32x32x16_bf16 {vr(S,16)}, {vr(F+4*sl,4)}, {vr(QR+4*sl,4)}, {'0' if sl == 0 else vr(S,16)}")
    q("s_nop 4")
    q(f"s_add_u32 {sT1}, {sT0}, 4096")
    for kt in range(2):
        for sp in range(4):
            q(f"buffer_load_dwordx4 {vr(F+16*kt+4*sp,4)}, {t2}, {sK}, {sT0 if kt == 0 else sT1} offen offset:{sp*64}")
    q("s_waitcnt vmcnt(0)")
    for kt in range(2):
        for sp in range(4):
            q(f"v_mfma_f32_16x16x32_bf16 {vr(S8+4*kt,4)}, {vr(F+16*kt+4*sp,4)}, {ar(aQ8+4*sp,4)}, {'0' if sp == 0 else vr(S8+4*kt,4)}")
    q("s_nop 15")
    for j in range(0, 16, 2): q(f"v_max3_f32 {t3}, {t3}, {vr(S+j)}, {vr(S+j+1)}")
    for j in range(0, 8, 2): q(f"v_max3_f32 {t4}, {t4}, {vr(S8+j)}, {vr(S8+j+1)}")
    q(f"""s_add_u32 {sT0}, {sT0}, 8192
    s_add_u32 {sT2}, {sT2}, 1
    s_cmp_lt_u32 {sT2}, 16
    s_cbranch_scc1 SLOWL{inst}
    v_mov_b32 {t0}, {t3}
    v_mov_b32 {t1}, {t4}
    s_nop 1
    v_permlane32_swap_b32 {t3}, {t0}
    v_permlane16_swap_b32 {t4}, {t1}
    v_max_f32 {t3}, {t3}, {t0}
    v_max_f32 {t4}, {t4}, {t1}
    v_mov_b32 {t1}, {t4}
    s_nop 1
    v_permlane32_swap_b32 {t4}, {t1}
    v_max_f32 {t4}, {t4}, {t1}""")
    for j in range(16): q(f"v_sub_f32 {vr(NEGM+j)}, 0, {t3}")
    for j in range(4): q(f"v_sub_f32 {vr(NEGM8+j)}, 0, {t4}")
    q.ext(kv_reset())
    for g in u_dma(0) + u_dma(1): q.ext(g)
    q(f"""s_waitcnt vmcnt(0)
    s_barrier
    s_branch ATT{inst}""")
    slow_code.extend(q.L)

def p_seg(p, stages, first, nxt, sig, checks):
    aW = S; vO8 = S + 9; B8 = S + 12
    WP = O; NP = 6; LAF = 4
    NS = len(stages); NK = 4 * NS
    ln = vr(vLane); t0, t1 = vr(T), vr(T+1)
    p(f"""v_lshrrev_b32 {t0}, 2, {ln}
    v_mul_u32_u24 {t0}, 288, {t0}
    v_and_b32 {t1}, 3, {ln}
    v_lshl_add_u32 {t0}, {t1}, 3, {t0}
    s_lshl_b32 {sT1}, {sW}, 6
    v_add_u32 {t0}, {sT1}, {t0}
    v_add_u32 {vr(vO8)}, {O8SLOT}, {vr(vLin)}""")
    for i in range(9):
        if i < 3: p(f"v_add_u32 {vr(aW+i)}, {32*i}, {t0}")
        else:
            p(f"""s_cmp_ge_u32 {sW}, {(9 - i + 1) // 2}
            s_cselect_b32 {sT0}, {(-288) & 0xffffffff}, 0
            s_add_u32 {sT0}, {sT0}, {32*i}
            v_add_u32 {vr(aW+i)}, {sT0}, {t0}""")
    p.ext(st(True))
    p("@waitvm wo0 lgkmcnt(0)")
    p("s_barrier")
    p.ext(st(True))
    def freads(F):
        k, i = divmod(F, 9)
        f = WP + 4 * (F % NP)
        off = ((k % 16) % 7) * 9216
        r = [f"ds_read_b64_tr_b16 {vr(f+2*u,2)}, {vr(aW+i)} offset:{off+u*4608}" for u in range(2)]
        if i == 0: r.append(f"ds_read_b128 {vr(B8+4*(k&1),4)}, {vr(vO8)} offset:{(k%16)*1024}")
        return r
    for F in range(LAF): p.ext(freads(F))
    mf = []; ds = {}; misc = {}
    first_gap = {}; free = {}
    for k in range(NK):
        free[k] = []
        for i in range(9):
            F = 9 * k + i
            f = WP + 4 * (F % NP)
            first_gap[F] = len(mf)
            for r in ([0, 1, 2] if i < 3 else [0, 1]):
                acc = aPacc + (4 * (2*i + r) if r < 2 else 72 + 4*i)
                c = "0" if (first and k == 0) else ar(acc, 4)
                b = ar(aPark+8*(k%4)+4*r, 4) if r < 2 else vr(B8+4*(k&1), 4)
                mf.append(f"v_mfma_f32_16x16x32_bf16 {ar(acc,4)}, {vr(f,4)}, {b}, {c}")
                if r >= 1: free[k].append(len(mf) - 1)
                if r == 1 and i < 3: free[k].append(len(mf) - 1)
    marks = {}
    for n in checks:
        marks[n], code = flag_load(sFlG)
        misc.setdefault(free[4*n - 3][0], []).extend(code)
    for F in range(LAF, 9 * NK):
        g = first_gap[F - LAF]
        k, i = divmod(F, 9)
        if i == 0 and k % 4 == 0:
            n = k // 4
            pre = flag_check(marks[n], sFlG, *checks[n]) if n in checks else []
            tags = f"wo{n}" + (",ost" if (sig and n == 1) else "")
            ds.setdefault(g, []).extend(pre + [f"@waitvm {tags}" + (" lgkmcnt(0)" if (NS == 2 and nxt == 'A') else ""), "s_barrier"] + st(True))
            if sig and n == 1: misc.setdefault(g + 1, []).extend(signal(sig))
        ds.setdefault(g, []).extend(freads(F))
        if k % 16 in (6, 13): misc.setdefault(g + 1, []).append(f"v_add_u32 {vr(aW+i)}, {7*9216}, {vr(aW+i)}")
        if k % 16 == 15 and k + 1 < NK: misc.setdefault(g + 1, []).append(f"v_subrev_u32 {vr(aW+i)}, {14*9216}, {vr(aW+i)}")
    pf = {}
    for n in range(NS):
        g = o8_dma(stages[n+1], n + 1) if n + 1 < NS else []
        if n + 2 < NS: g2 = wo_dma(stages[n+2], n + 2)
        elif nxt == 'A' and NS == 2: g2 = u_dma(0) + u_dma(1)[:4] if n == 1 else []
        elif nxt == 'A': g2 = u_dma(n + 2 - NS)
        else: g2 = []
        pf[4*n] = g + g2[:3]
        g2 = g2[3:]
        for k in range(1, 4): pf[4*n + k] = g2[((k-1)*len(g2))//3:(k*len(g2))//3]
    for k in range(NK):
        g = (oloads(stages, k + LAO) if k + LAO < NK else []) + pf[k]
        if g: spread(g, free[k][1:-1], misc)
        if k + 1 < NK: misc.setdefault(free[k][-1], []).append(f"@waitvm o{k+1}")
    p("@waitvm o0")
    p.ext(st(True))
    p.ext(weave(mf, ds, misc, []))

def f_phase(G):
    p = Prog()
    ln = vr(vLane); t0, t1 = vr(T), vr(T+1)
    units = {g: [3*g + k for k in range(3) if 3*g + k <= 10] for g in range(4)}
    p(f"""FIN{G}:
    s_lshl_b32 {sT1}, {sBlk}, 3
    s_add_u32 {sT1}, {sT1}, {sB}
    s_lshl_b32 {sT1}, {sT1}, 2
    s_add_u32 {sT1}, {sT1}, {sJ}
    s_lshl_b32 {sT1}, {sT1}, 6
    s_add_u32 {sT1}, {sT1}, {sW}
    s_mul_i32 {sOldA}, {sT1}, 3072
    s_add_u32 {sOldA}, {sOldA}, {PART}""")
    tb = 0
    for d in range(1, 4):
        Gd = (G + d) % 4
        p(f"s_add_u32 {sT0}, {sOldA}, {(Gd*16 + G*4) * 3072}")
        for k, u in enumerate(units[Gd]):
            b = O + 12 * (tb % 4); tb += 1
            nreg = 8 if u < 10 else 4
            for j in range(nreg): p(f"v_accvgpr_read_b32 {vr(b+j)}, {ar(aPacc+8*u+j)}")
            for j in range(nreg // 2): p(f"v_cvt_pk_bf16_f32 {vr(b+8+j)}, {vr(b+2*j)}, {vr(b+2*j+1)}")
            p(f"buffer_store_dwordx4 {vr(b+8,4)}, {vr(vLin)}, {sWS}, {sT0} offen offset:{k*1024} {OST}")
    AC = P; LD = O; vOut = S
    for k, u in enumerate(units[G]):
        for j in range(8 if u < 10 else 4): p(f"v_accvgpr_read_b32 {vr(AC+8*k+j)}, {ar(aPacc+8*u+j)}")
    p(f"""v_and_b32 {t0}, 15, {ln}
    v_mul_u32_u24 {t0}, 2304, {t0}
    v_lshrrev_b32 {t1}, 4, {ln}
    v_lshl_add_u32 {vr(vOut)}, {t1}, 3, {t0}
    s_mul_i32 {sT2}, {sB}, {144*2304}
    s_mul_i32 {sT1}, {sJ}, 288
    s_add_u32 {sT2}, {sT2}, {sT1}
    s_mul_i32 {sT1}, {sBlk}, 1152
    s_add_u32 {sT2}, {sT2}, {sT1}
    s_lshl_b32 {sT1}, {sW}, 6
    s_add_u32 {sT2}, {sT2}, {sT1}""")
    so = [sKoff, sVoff, sWQoff, sXoff, sStage, sXbase]
    tiles = []
    for k, u in enumerate(units[G]):
        for r in range(2 if u < 10 else 1):
            tiles.append((AC + 8*k + 4*r, so[len(tiles)], u if u < 9 else (u - 9) * 2 + r, r if u < 9 else None))
    if G < 3: p(f"s_mul_i32 {sT1}, {sW}, {32*2304}\ns_add_u32 {sT2}, {sT2}, {sT1}")
    for reg, s_, i, r in tiles:
        row = (16 * r if r is not None else 128) * 2304
        if i >= 3:
            p(f"""s_cmp_ge_u32 {sW}, {(9 - i + 1) // 2}
            s_cselect_b32 {sT0}, {(-288) & 0xffffffff}, 0
            s_add_u32 {sT0}, {sT0}, {32*i + row}
            s_add_u32 {s_}, {sT2}, {sT0}""")
        else: p(f"s_add_u32 {s_}, {sT2}, {32*i + row}")
        if r is None and i == 2:
            p(f"s_cmp_eq_u32 {sW}, 3\ns_cselect_b32 {s_}, {s_}, 0x40000000")
    p(f"s_add_u32 {sOldA}, {sOldA}, {G*16*3072}")
    p.ext(st(True))
    p("s_waitcnt vmcnt(0)")
    p.ext(st(True))
    m = newlab()
    p(f"""s_lshl_b32 {sT0}, {sW}, 4
    s_add_u32 {sFlS}, {sFlS}, {sT0}
    s_add_u32 {sM0}, {sFlS}, {4*G}
    s_mov_b64 exec, 1
    v_mov_b32 {vr(T+7)}, 1
    buffer_store_dword {vr(T+7)}, {vr(vZero)}, {sWS}, {sM0} offen sc1 ;@nocount
    s_mov_b64 exec, -1
    s_mov_b32 {sT3}, 0x20000
    CL{m}:
    buffer_load_dwordx4 {vr(T+2,4)}, {vr(vZero)}, {sWS}, {sFlS} offen sc1 ;@nocount
    s_waitcnt vmcnt(0) ;@nocount
    v_min_u32 {vr(T+6)}, {vr(T+2)}, {vr(T+3)}
    v_min3_u32 {vr(T+6)}, {vr(T+6)}, {vr(T+4)}, {vr(T+5)}
    s_nop 0
    v_readfirstlane_b32 {sM0}, {vr(T+6)}
    s_nop 0
    s_cmp_ge_u32 {sM0}, 1
    s_cbranch_scc1 CE{m}
    s_sleep {OPT['fsleep']}
    s_sub_u32 {sT3}, {sT3}, 1
    s_cbranch_scc0 CL{m}
    CE{m}:""")
    p.ext(st(True))
    srcs = [(G + d) % 4 for d in range(1, 4)]
    for k, u in enumerate(units[G]):
        for d, Gs in enumerate(srcs):
            p(f"s_add_u32 {sT0}, {sOldA}, {Gs*4*3072}")
            p(f"buffer_load_dwordx4 {vr(LD+12*k+4*d,4)}, {vr(vLin)}, {sWS}, {sT0} offen offset:{k*1024} {OLD}")
    p(f"s_mov_b32 {sT0}, 0xffff0000")
    ti = 0
    for k, u in enumerate(units[G]):
        for d in range(3):
            for j in range(4 if u < 10 else 2):
                x = LD + 12*k + 4*d + j
                p(f"v_lshlrev_b32 {t0}, 16, {vr(x)}")
                p(f"v_and_b32 {t1}, {sT0}, {vr(x)}")
                p(f"v_add_f32 {vr(AC+8*k+2*j)}, {vr(AC+8*k+2*j)}, {t0}")
                p(f"v_add_f32 {vr(AC+8*k+2*j+1)}, {vr(AC+8*k+2*j+1)}, {t1}")
        for r in range(2 if u < 10 else 1):
            reg, s_, _, _ = tiles[ti]; ti += 1
            p(f"v_cvt_pk_bf16_f32 {vr(reg)}, {vr(reg)}, {vr(reg+1)}")
            p(f"v_cvt_pk_bf16_f32 {vr(reg+1)}, {vr(reg+2)}, {vr(reg+3)}")
            p(f"buffer_store_dwordx2 {vr(reg,2)}, {vr(vOut)}, {sOUT}, {s_} offen")
    if STAMP:
        e = STB + 2 * (NST - 2)
        p(f"""s_waitcnt vmcnt(0)
        s_memtime s[{e}:{e+1}]
        s_memrealtime s[{e+2}:{e+3}]
        s_waitcnt lgkmcnt(0)
        s_lshl_b32 s3, s2, 2
        s_add_u32 s3, s3, {sW}
        s_lshl_b32 s3, s3, 7
        s_add_u32 s3, s3, {WSSIZE}
        s_mov_b32 s26, {WSSIZE + 262144}
        s_mov_b64 exec, 1""")
        for k in range(NST): p(f"v_mov_b32 v{k}, s{STB+2*k}")
        for k in range(0, 20, 4): p(f"buffer_store_dwordx4 v[{k}:{k+3}], {vr(vZero)}, {sWS}, s3 offen offset:{4*k}")
    p("s_endpgm")
    L_ = merge_waits(auto_lgkm(auto_vm(p.L)))
    return L_, len(check_hazards(L_))

def prologue(p):
    p(f"""s_cmp_ge_u32 s2, 256
    s_cbranch_scc1 K_END
    s_load_dwordx8 s[68:75], s[0:1], 0
    s_load_dwordx8 s[76:83], s[0:1], 40
    s_load_dwordx2 s[84:85], s[0:1], 32
    s_load_dwordx2 s[86:87], s[0:1], 72
    s_load_dwordx2 s[32:33], s[0:1], 80
    s_load_dwordx2 s[36:37], s[0:1], 88
    s_load_dwordx2 s[24:25], s[0:1], 96
    v_and_b32 {vr(vLane)}, 63, v0
    v_lshrrev_b32 v1, 6, v0
    s_and_b32 s3, s2, 7
    v_readfirstlane_b32 {sW}, v1
    s_lshr_b32 s4, s2, 3
    s_lshr_b32 {sBlk}, s3, 2
    s_and_b32 {sG}, s3, 3
    s_and_b32 {sB}, s4, 7
    s_lshr_b32 {sJ}, s4, 3
    s_lshl_b32 s5, {sJ}, 1
    s_lshl_b32 s3, {sG}, 3
    s_add_u32 s3, s3, s5
    s_add_u32 {sStage0}, s5, {sB}
    s_cmp_ge_u32 {sStage0}, 9
    s_cselect_b32 s5, 9, 0
    s_sub_u32 {sStage0}, {sStage0}, s5
    s_mov_b32 {sStage}, {sStage0}
    s_lshl_b32 {sW4096}, {sW}, 12
    s_mul_i32 {sXm0}, {sW}, 5120
    s_mul_i32 {sXbase}, {sB}, 165888
    s_and_b32 s5, {sJ}, 1
    s_add_u32 s5, s5, s3
    s_lshl_b32 {sWQbase}, s5, 8
    s_lshl_b32 s5, {sB}, 5
    s_add_u32 s5, s5, s3
    s_lshl_b32 {sPair}, s5, 17
    s_lshl_b32 s6, {sBlk}, 8
    s_add_u32 s5, s5, s6
    s_mul_i32 {sOst}, s5, {OHEAD}
    s_mov_b32 s10, 1327104
    s_mov_b32 s11, 0x20000
    s_mov_b32 s14, 33554432
    s_mov_b32 s15, 0x20000
    s_mov_b32 s18, 33554432
    s_mov_b32 s19, 0x20000
    s_mov_b32 s22, 4718592
    s_mov_b32 s23, 0x20000
    s_mov_b32 s26, {WSSIZE}
    s_mov_b32 s27, 0x20000
    s_mov_b32 s30, 4718592
    s_mov_b32 s31, 0x20000
    s_mov_b32 s34, 2654208
    s_mov_b32 s35, 0x20000""")
    ln = vr(vLane)
    t0, t1, t2, t3, t4, t5 = [vr(T+i) for i in range(6)]
    l16, l4, r32, hh, cc, rr = [vr(S8+i) for i in range(6)]
    g1, l7, l3 = [vr(S8+6+i) for i in range(3)]
    p(f"""v_and_b32 {l16}, 15, {ln}
    v_lshrrev_b32 {l4}, 4, {ln}
    v_and_b32 {l7}, 7, {ln}
    v_lshrrev_b32 {l3}, 3, {ln}
    v_lshlrev_b32 {t0}, 2, {l4}
    v_xor_b32 {t0}, {t0}, {l16}
    v_lshlrev_b32 {t0}, 4, {t0}
    s_lshl_b32 s3, {sW}, 4
    v_add_u32 {t1}, s3, {l4}
    v_lshl_add_u32 {vr(dWQ)}, {t1}, 13, {t0}""")
    for i in range(1, 4): p(f"v_add_u32 {vr(dWQ+i)}, {i*(32768-1024)}, {vr(dWQ)}")
    p(f"s_mul_i32 s3, {sW}, 5")
    p(f"v_mul_u32_u24 {t1}, 1152, {l3}")
    for i in range(5):
        p(f"""s_add_u32 s4, s3, {i}
        s_lshl_b32 s5, s4, 2
        s_mul_i32 s4, s4, 9216
        v_add_u32 {t0}, s5, {l4}
        v_and_b32 {t0}, 7, {t0}
        v_xor_b32 {t0}, {t0}, {l7}
        v_lshlrev_b32 {t0}, 4, {t0}
        s_sub_u32 s4, s4, {i*1024 if i < 4 else 0}
        v_add3_u32 {vr(dX+i)}, {t0}, {t1}, s4""")
    p(f"""s_lshl_b32 s6, {sBlk}, 3
    s_add_u32 s6, s6, {sB}
    s_lshl_b32 s3, s6, 10
    s_add_u32 s3, s3, {FLAGS}
    s_lshl_b32 s5, {sG}, 7
    s_add_u32 {sFlG}, s3, s5
    s_lshl_b32 s5, {sJ}, 7
    s_add_u32 {sFlS}, s3, s5
    s_add_u32 {sFlS}, {sFlS}, 512
    v_mov_b32 {vr(vZero)}, 0
    v_lshlrev_b32 {vr(vLin)}, 4, {ln}
    s_lshl_b32 s5, s6, 2
    v_mov_b32 {vr(vInit)}, s5
    s_waitcnt lgkmcnt(0)
    s_cmp_eq_u32 {sBlk}, 0
    s_cselect_b64 s[8:9], s[68:69], s[76:77]
    s_cselect_b64 s[12:13], s[70:71], s[78:79]
    s_cselect_b64 s[16:17], s[72:73], s[80:81]
    s_cselect_b64 s[20:21], s[74:75], s[82:83]
    s_cselect_b64 s[28:29], s[84:85], s[86:87]""")
    if STAMP: p(f"s_memtime s[{STB}:{STB+1}]\ns_memrealtime s[{STB+2}:{STB+3}]")
    p(f"""s_lshl_b32 s5, {sG}, 2
    s_add_u32 s5, s5, {sJ}
    s_lshl_b32 s5, s5, 2
    s_add_u32 s5, s5, {sW}
    s_cmp_lg_u32 s5, 3
    s_cbranch_scc1 NOINIT
    v_mov_b32 v10, 0
    v_mov_b32 v11, 0
    v_mov_b32 v12, 0
    v_mov_b32 v13, 0
    buffer_store_dwordx4 v[10:13], {vr(vLin)}, {sWS}, s3 offen sc1 ;@nocount
    NOINIT:""")
    for g in q_dma(0, "q0"): p.ext(g)
    p(f"""v_and_b32 {r32}, 31, {ln}
    v_lshrrev_b32 {hh}, 5, {ln}
    v_and_b32 {cc}, 3, {ln}
    v_bfe_u32 {rr}, {ln}, 2, 2
    v_and_b32 {g1}, 1, {l4}
    v_and_b32 {t0}, 1, {cc}
    v_lshl_add_u32 {t0}, {g1}, 1, {t0}
    v_lshlrev_b32 {t0}, 4, {t0}
    v_lshrrev_b32 {t1}, 1, {cc}
    v_lshl_add_u32 {t2}, {t1}, 3, {t0}
    v_lshl_add_u32 {t0}, {hh}, 3, {rr}
    v_lshl_add_u32 {t3}, {t0}, 8, {t2}
    v_add_u32 {t3}, {WBASE}, {t3}""")
    for dl in range(4):
        p(f"""s_add_u32 s3, {sW}, {dl}
        s_and_b32 s3, s3, 3
        v_xor_b32 {t0}, s3, {rr}
        v_lshl_add_u32 {vr(aWQ+dl)}, {t0}, 6, {t3}""")
    p(f"""v_bfe_u32 {t1}, {r32}, 1, 3
    v_lshlrev_b32 {t3}, 7, {r32}
    v_add_u32 {t3}, {XBASE}, {t3}""")
    for s in range(4):
        p(f"""v_add_u32 {t0}, {2*s}, {hh}
        v_xor_b32 {t0}, {t0}, {t1}
        v_lshl_add_u32 {t0}, {t0}, 4, {t3}
        v_add_u32 {vr(aX+s)}, {sW4096}, {t0}
        v_add_u32 {vr(aX8+s)}, {128*128}, {t0}""")
    for g in q_dma(1, "q1"): p.ext(g)
    pp = p; p = Prog()
    for i in range(4):
        p(f"""v_add_u32 {t0}, {4*i}, {l4}
        v_xor_b32 {t0}, {t0}, {l16}
        v_lshlrev_b32 {t0}, 4, {t0}
        v_lshl_add_u32 {t0}, {l4}, 8, {t0}
        v_add_u32 {vr(dK+i)}, {sW4096}, {t0}""")
    p(f"""v_lshlrev_b32 {t0}, 2, {l4}
    v_xor_b32 {t0}, {t0}, {l16}
    v_lshlrev_b32 {t0}, 4, {t0}
    v_lshl_add_u32 {t0}, {l4}, 8, {t0}
    v_add_u32 {vr(dV)}, {sW4096}, {t0}
    v_xor_b32 {vr(dV+1)}, 32, {vr(dV)}
    v_xor_b32 {t0}, {g1}, {hh}
    v_lshlrev_b32 {t0}, 5, {t0}
    v_lshl_add_u32 {t2}, {cc}, 3, {t0}
    v_lshl_add_u32 {t0}, {hh}, 2, {rr}
    v_lshl_add_u32 {t3}, {t0}, 8, {t2}
    v_add_u32 {t3}, 65536, {t3}""")
    for D in range(4):
        p(f"""v_xor_b32 {t0}, {D}, {rr}
        v_lshl_add_u32 {vr(aV+D)}, {t0}, 6, {t3}""")
    p(f"v_lshlrev_b32 {t3}, 8, {r32}")
    for sl in range(8):
        p(f"""s_lshl_b32 s3, {sW}, 1
        s_add_u32 s3, s3, {sl}
        s_and_b32 s3, s3, 7
        s_lshl_b32 s3, s3, 1
        v_add_u32 {t0}, s3, {hh}
        v_xor_b32 {t0}, {t0}, {l16}
        v_lshl_add_u32 {vr(aK+sl)}, {t0}, 4, {t3}""")
    p(f"""s_lshl_b32 s3, {sW}, 13
    v_lshlrev_b32 {t3}, 8, {l16}
    v_add_u32 {t3}, s3, {t3}""")
    for sp in range(4):
        p(f"""v_add_u32 {t0}, {4*sp}, {l4}
        v_xor_b32 {t0}, {t0}, {l16}
        v_lshl_add_u32 {vr(aK8+sp)}, {t0}, 4, {t3}""")
    p(f"""v_lshl_add_u32 {t0}, {l4}, 2, {rr}
    v_and_b32 {t1}, 1, {cc}
    v_lshlrev_b32 {t1}, 3, {t1}
    v_lshl_add_u32 {t3}, {t0}, 8, {t1}
    s_add_u32 s3, s3, 65536
    v_add_u32 {t3}, s3, {t3}
    v_lshlrev_b32 {t0}, 2, {rr}
    v_lshl_add_u32 {t0}, {g1}, 1, {t0}
    v_lshrrev_b32 {t1}, 1, {cc}
    v_xor_b32 {t2}, {t0}, {t1}""")
    for D in range(8):
        p(f"""v_xor_b32 {t0}, {2*D}, {t2}
        v_lshl_add_u32 {vr(aV8+D)}, {t0}, 4, {t3}""")
    p(f"""v_lshl_add_u32 {t0}, {hh}, 4, {r32}
    s_lshl_b32 s3, {sW}, 10
    s_add_u32 s3, s3, {Q8BUF}
    v_lshl_add_u32 {vr(vQ8w)}, {t0}, 4, s3
    v_lshlrev_b32 {t0}, 4, {l16}
    v_lshl_add_u32 {t1}, {g1}, 12, {t0}
    v_lshl_add_u32 {vr(vOst)}, {hh}, 8, {t1}
    v_add_u32 {vr(vL8r)}, {L8BUF}, {t0}
    s_lshl_b32 s3, {sW}, 2
    v_add_u32 {vr(vL8w)}, s3, {vr(vL8r)}
    s_mul_i32 s3, {sW}, {32*1152}
    s_movk_i32 s7, 3641""")
    for i in range(9):
        p(f"""v_add_u32 {t0}, {64*i}, {ln}
        v_mul_u32_u24 {t1}, s7, {t0}
        v_lshrrev_b32 {t1}, 16, {t1}
        v_mul_u32_u24 {t2}, {1152-288}, {t1}
        v_lshl_add_u32 {t0}, {t0}, 4, {t2}
        s_sub_u32 s5, s3, {(i%4)*1024}
        v_add_u32 {vr(dWO+i)}, s5, {t0}""")
    p(f"""s_mul_i32 {sWOm0}, {sW}, 9216
    s_mul_i32 {sWObase}, {sG}, {8*WHEAD}
    s_mul_i32 s3, {sJ}, 288
    s_add_u32 {sWObase}, {sWObase}, s3
    s_and_b32 {sRb}, {sB}, 1
    s_lshr_b32 {sRj}, {sJ}, 1
    s_lshl_b32 s3, {sBlk}, 3
    s_add_u32 s3, s3, {sB}
    s_lshl_b32 s3, s3, 2
    s_add_u32 s3, s3, {sG}
    s_mul_i32 {sObase}, s3, {8*OHEAD}
    s_mov_b32 {sScale}, 0x3e0293ee""")
    p.ext(kv_reset())

    return p.L

def warm_groups():
    ln = vr(vLane); a0, a1 = vr(T), vr(T+1)
    return [[f"s_lshl_b32 {sT0}, {sG}, 3", f"s_add_u32 {sT0}, {sT0}, {sB}"], [f"s_lshl_b32 {sT0}, {sT0}, 2", f"s_add_u32 {sT0}, {sT0}, {sJ}"],
            [f"s_lshl_b32 {sT0}, {sT0}, 2", f"s_add_u32 {sT0}, {sT0}, {sW}"], [f"s_mul_i32 {sT0}, {sT0}, 9216", f"v_lshlrev_b32 {a0}, 7, {ln}"],
            [f"v_and_b32 {a1}, 0x3ff, {a0}"],
            [f"buffer_load_dword {vr(255)}, {a0}, {sWO}, {sT0} offen ;@dummy", f"s_add_u32 {sT0}, {sT0}, 8192"],
            [f"buffer_load_dword {vr(255)}, {a1}, {sWO}, {sT0} offen ;@dummy"]]
def touch_groups():
    return [[f"s_mul_i32 {sT0}, {sB}, {144*2304}", f"buffer_load_dword {vr(255)}, {vr(vZero)}, {sOUT}, {sT0} offen ;@dummy"],
            [f"buffer_load_dword {vr(255)}, {vr(vZero)}, {sWS}, {sOst} offen ;@dummy"],
            [f"s_lshl_b32 {sT0}, {sBlk}, 3", f"s_add_u32 {sT0}, {sT0}, {sB}"], [f"s_mul_i32 {sT0}, {sT0}, {4*64*3072}", f"s_add_u32 {sT0}, {sT0}, {PART}"],
            [f"buffer_load_dword {vr(255)}, {vr(vZero)}, {sWS}, {sT0} offen ;@dummy"]]

def program(pro, fill, sg):
    p = Prog(); p.L = list(pro)
    n0 = len(p.L)
    nstamp[0] = 2
    def ph(name):
        cur[0] = name; p.ext(st(True))
    def end(): p.ext(st()); p.ext(st(True))
    ex = {}
    if 'a' in OPT["warm"]: ex = {1: warm_groups(), 3: touch_groups()}
    if 't' in OPT["warm"]: ex = {3: touch_groups()}
    if sg == 0:
        allp = [(0,0,0,sRb), (0,0,1,sRb), (1,0,0,sRb), (1,0,1,sRb), (1,1,0,sRb), (1,1,1,sRb), (0,1,0,sRj), (0,1,1,sRj)]
        m = int(OPT["m"])
        Pa, Pb = allp[:m], allp[m:]
        ph("Q0"); q_phase(p, False, 'A', 0, 256, True, fillers=fill); end()
        ph("A0"); a_phase(p, "00", 'Q', 'Q', 0, extra=ex); end()
        ph("Q1"); q_phase(p, False, 'P', 1, 0, False, Pa, (0, 1)); end()
        ph("P0"); p_seg(p, Pa, True, 'A', 0, {1: (1, 1)} if m == 4 else {}); end()
        if m == 4:
            ph("A1"); a_phase(p, "01", 'P', 'P', 0, Pb, (1, 2)); end()
            ph("P1"); p_seg(p, Pb, False, 'F', 2, {2: (0, 2)}); end()
        else:
            ph("A1"); a_phase(p, "01", 'P2', 'P', 0, Pb, (1, 1)); end()
            ph("P1"); p_seg(p, Pb, False, 'F', 2, {1: (1, 2), 4: (0, 2)}); end()
    else:
        Pa = [(0,0,0,sRb), (0,0,1,sRb), (1,0,0,sRb), (1,0,1,sRb), (1,1,0,sRj), (1,1,1,sRj), (0,1,0,sRb), (0,1,1,sRb)]
        ph("Q0"); q_phase(p, True, 'Q', 0, -256, True, fillers=fill); end()
        ph("Q1"); q_phase(p, False, 'A', 0, 0, False); end()
        ph("A0"); a_phase(p, "10", 'Q', 'A', 0, extra=ex); end()
        ph("A1"); a_phase(p, "11", 'A', 'P', 1, Pa, (None, 1)); end()
        ph("P0"); p_seg(p, Pa, True, 'F', 2, {4: (1, 2), 5: (0, 2)}); end()
        p.ext(st())
    p(f"""s_cmp_eq_u32 {sG}, 0
    s_cbranch_scc1 FIN0
    s_cmp_eq_u32 {sG}, 1
    s_cbranch_scc1 FIN1
    s_cmp_eq_u32 {sG}, 2
    s_cbranch_scc1 FIN2
    s_branch FIN3""")
    mark = "BODY_MARK:"
    L_ = p.L[:n0] + [mark] + p.L[n0:]
    L_ = merge_waits(auto_lgkm(auto_vm(L_)))
    bad = check_hazards(L_)
    k = L_.index(mark)
    return L_[:k], L_[k+1:], len(bad)

def main():
    pro = Prog(); fill = [x.strip() for x in prologue(pro)]
    h0, b0, n0 = program(pro.L, fill, 0)
    h1, b1, n1 = program(pro.L, fill, 1)
    assert h0 == h1
    slow = auto_lgkm(slow_code)
    n2 = len(check_hazards(slow))
    fin = []
    cur[0] = "F0"
    for G in range(4):
        nstamp[0] = 2 if OPT["smode"] == "F0" else 8
        if OPT["smode"] not in ("", "F0"): nstamp[0] = 99
        f, n = f_phase(G); fin += f; n2 += n
    body = h0 + [f"s_bitcmp1_b32 {sJ}, 0", "s_cbranch_scc1 PROG1J", "s_branch PROG0", "PROG1J:", "s_branch PROG1",
                 "K_END:", "s_endpgm", "PROG0:"] + b0 + slow[:len(slow)//2] + fin + slow[len(slow)//2:] + ["PROG1:"] + b1
    body = strip(body)
    kn = NAME + "_kernel"
    hdr = open('cdna_kernels/' + NAME + '.s.ref').read().split('; Override launch')[0]
    s = hdr + "; @launch grid=(256,1,1) block=(256,1,1) lds=163840\n"
    s += f'.amdgcn_target "amdgcn-amd-amdhsa--gfx950"\n.text\n.globl {kn}\n.p2align 8\n.type {kn},@function\n{kn}:\n' + "\n".join(body) + "\n"
    s += f""".section .rodata,"a"
.p2align 6
.amdhsa_kernel {kn}
  .amdhsa_next_free_vgpr {NV + NA}
  .amdhsa_next_free_sgpr 102
  .amdhsa_accum_offset {NV}
  .amdhsa_group_segment_fixed_size 0
  .amdhsa_kernarg_size 104
  .amdhsa_user_sgpr_count 2
  .amdhsa_user_sgpr_kernarg_segment_ptr 1
  .amdhsa_system_sgpr_workgroup_id_x 1
.end_amdhsa_kernel
"""
    fn = OPT.get("out", "cdna_kernels/" + NAME + ".s")
    open(fn, "w").write(s)
    print("written", fn, "lines", len(body), "bytes", len(s), "hazards:", n0 + n1 + n2)
main()
```

```python
import sys
from asmlib import *

NAME = "concat_heads__mha_block_cached__mha_block_cached__near_ridge"
OPT = dict(kv="nt", w="", ost="sc1", old="sc1", smode="", warm="a", sleep="4", fsleep="1", m="2")
for a in sys.argv[1:]:
    if "=" in a:
        k, v = a.split("=", 1); OPT[k] = v.replace("+", " ")
KV_FLAGS, W_FLAGS, OST, OLD = OPT["kv"], OPT["w"], OPT["ost"], OPT["old"]
STAMP = "stamp" in sys.argv

def vr(b, n=1): return f"v{b}" if n == 1 else f"v[{b}:{b+n-1}]"
def ar(b, n=1): return f"a{b}" if n == 1 else f"a[{b}:{b+n-1}]"
K = 1024
OHEAD = 36864
WHEAD = 128 * 1152
OSIZE = 512 * OHEAD
PART = OSIZE
PSIZE = 64 * 64 * 3 * 1024
FLAGS = OSIZE + PSIZE
WSSIZE = FLAGS + 16384
sX, sK, sV, sWQ, sWS, sWO, sOUT, sDBG = "s[8:11]", "s[12:15]", "s[16:19]", "s[20:23]", "s[24:27]", "s[28:31]", "s[32:35]", "s[36:37]"
names = ("sW sW4096 sXm0 sPair sKoff sVoff sWQoff sXoff sStage sB sBlk sG sJ sXbase sWQbase sOst sRetry sStage0 sWOm0 sWOoff "
         "sOldA sOldB sObase sWObase sFlG sFlS sRb sRj").split()
for i, n in enumerate(names): globals()[n] = f"s{38+i}"
sScale = "s4"
sT0, sT1, sT2, sT3 = "s3", "s6", "s7", "s5"
sM = "s[66:67]"; sM0 = "s66"
STB = 68; NST = 17
O = 0; S = 64; P = 96; QR = 112; S8 = 144; P8 = 152; NEGM = 156; NEGM8 = 172; L = 176; L8 = 177; T = 178
aK = 186; aK8 = 194; aV = 198; aV8 = 202; aWQ = 210; aX = 214; aX8 = 218
dK = 222; dV = 226; dWQ = 228; dX = 232
vLin = 237; vOst = 238; vQ8w = 239; vL8w = 240; vL8r = 241; vLane = 242; vZero = 243; dWO = 244; vInit = 253
NV = 256
aQ8 = 0; aO8 = 16; aPark = 48; aPacc = 96; aPool = 180; NPOOL = 12
NA = 232
XSLOT = [64*K, 44*K, 84*K]; XBASE = 44*K
WSLOT = [128*K, 144*K, 112*K]; WBASE = 112*K
Q8BUF = 104*K; L8BUF = 84*K; MRG = 96*K; O8SLOT = 144*K

nstamp = [2]; cur = [""]
def st(detail=False):
    if not STAMP or nstamp[0] >= NST - 2: return []
    if detail != (OPT["smode"] != ""): return []
    if detail and cur[0] != OPT["smode"]: return []
    k = nstamp[0]; nstamp[0] += 1
    return [f"s_mem{'real' if 'delay' in OPT else ''}time s[{STB+2*k}:{STB+2*k+1}]"]
lab = [0]
def newlab():
    lab[0] += 1; return lab[0]

def q_dma(slot, tag):
    g = []
    t = f";@tag={tag}"
    g.append([f"s_mul_i32 {sWQoff}, {sStage}, {64*8192}", f"s_add_u32 {sWQoff}, {sWQoff}, {sWQbase}"])
    g.append([f"s_lshl_b32 {sXoff}, {sStage}, 7", f"s_add_u32 {sXoff}, {sXoff}, {sXbase}"])
    g.append([f"s_add_u32 m0, {sW4096}, {WSLOT[slot]}", f"s_add_u32 {sStage}, {sStage}, 1",
              f"buffer_load_dwordx4 {vr(dWQ)}, {sWQ}, {sWQoff} offen {W_FLAGS} lds {t}"])
    for i in range(1, 4):
        g.append([f"buffer_load_dwordx4 {vr(dWQ+i)}, {sWQ}, {sWQoff} offen offset:{i*1024} {W_FLAGS} lds {t}"])
    g.append([f"s_add_u32 m0, {sXm0}, {XSLOT[slot]}", f"s_cmp_eq_u32 {sStage}, 9", f"s_cselect_b32 {sStage}, 0, {sStage}",
              f"buffer_load_dwordx4 {vr(dX)}, {sX}, {sXoff} offen {W_FLAGS} lds {t}"])
    g.append([f"buffer_load_dwordx4 {vr(dX+1)}, {sX}, {sXoff} offen offset:1024 {W_FLAGS} lds {t}"])
    for i in range(2, 4):
        g.append([f"buffer_load_dwordx4 {vr(dX+i)}, {sX}, {sXoff} offen offset:{i*1024} {W_FLAGS} lds {t}"])
    g.append([f"s_add_u32 m0, {sXm0}, {XSLOT[slot] + 4096}", "s_nop 0",
              f"buffer_load_dwordx4 {vr(dX+4)}, {sX}, {sXoff} offen {W_FLAGS} lds {t}"])
    return g

def u_dma(e):
    g = []
    t = f";@tag=u{e}"
    if e <= 7:
        g.append([f"s_add_u32 m0, {sW4096}, {(e % 4) * 16384}", f"s_add_u32 {sKoff}, {sKoff}, 16384",
                  f"buffer_load_dwordx4 {vr(dK)}, {sK}, {sKoff} offen {KV_FLAGS} lds {t}"])
        for i in range(1, 4):
            g.append([f"buffer_load_dwordx4 {vr(dK+i)}, {sK}, {sKoff} offen offset:{i*1024} {KV_FLAGS} lds {t}"])
    if e >= 1:
        g.append([f"s_add_u32 m0, {sW4096}, {65536 + ((e-1) % 4) * 16384}", f"s_add_u32 {sVoff}, {sVoff}, 16384",
                  f"buffer_load_dwordx4 {vr(dV)}, {sV}, {sVoff} offen {KV_FLAGS} lds {t}"])
        for i in range(1, 4):
            g.append([f"buffer_load_dwordx4 {vr(dV+(i&1))}, {sV}, {sVoff} offen offset:{i*1024} {KV_FLAGS} lds {t}"])
    return g
def kv_reset(extra=0):
    return [f"s_add_u32 {sKoff}, {sPair}, {(extra - 16384) & 0xffffffff}", f"s_mov_b32 {sVoff}, {sKoff}"]

def stage_off(stg, dst, size, base):
    c, sg, idx, r = stg
    return [[f"s_xor_b32 {sT1}, {r}, {idx}", f"s_mul_i32 {sT1}, {sT1}, {4*size}"],
            [f"s_add_u32 {sT1}, {sT1}, {(2*c+sg)*size}", f"s_add_u32 {dst}, {sT1}, {base}"]]
def wo_dma(stg, n):
    t = f";@tag=wo{n}"
    g = stage_off(stg, sWOoff, WHEAD, sWObase)
    for i in range(9):
        pre = [f"s_add_u32 m0, {sWOm0}, {(n%4)*36864 + (i//4)*4096}", "s_nop 0"] if i % 4 == 0 else []
        off = f"offset:{(i%4)*1024} " if i % 4 else ""
        g.append(pre + [f"buffer_load_dwordx4 {vr(dWO+i)}, {sWO}, {sWOoff} offen {off}{W_FLAGS} lds {t}"])
    return g
def o8_dma(stg, n):
    g = stage_off(stg, sM0, OHEAD, sObase)
    g.append([f"s_lshr_b32 {sT1}, {sW4096}, 2", f"s_add_u32 {sM0}, {sM0}, {sT1}"])
    g.append([f"s_add_u32 m0, {sT1}, {O8SLOT + (n%4)*4096}", f"s_add_u32 {sM0}, {sM0}, 32768",
              f"buffer_load_dwordx4 {vr(vLin)}, {sWS}, {sM0} offen {OLD} lds ;@tag=wo{n}"])
    return g
def oloads(stages, k):
    n, ks = k >> 2, k & 3
    g = []
    if ks == 0:
        g += stage_off(stages[n], sOldA, OHEAD, sObase)
        g.append([f"s_lshl_b32 {sT1}, {sW4096}, 1", f"s_add_u32 {sOldA}, {sOldA}, {sT1}", f"s_add_u32 {sOldB}, {sOldA}, 4096"])
    for r, so in enumerate((sOldA, sOldB)):
        g.append([f"buffer_load_dwordx4 {ar(aPark+8*(k%4)+4*r,4)}, {vr(vLin)}, {sWS}, {so} offen offset:{ks*1024} {OLD} ;@tag=o{k}"])
    return g
LAO = 3
def p_pre3(stages):
    g = o8_dma(stages[0], 0)
    for k in range(LAO): g += oloads(stages, k)
    return g

def spread(groups, gaps, misc):
    n = len(groups)
    for k, grp in enumerate(groups):
        misc.setdefault(gaps[(k * len(gaps)) // n], []).extend(grp)

def signal(val, line=None, own=None):
    n = newlab()
    line = line or sFlG; own = own or sJ
    return [f"s_cmp_lg_u32 {sW}, 0", f"s_cbranch_scc1 SIG{n}", "s_mov_b64 exec, 1", f"v_mov_b32 {vr(T+7)}, {val}",
            f"s_lshl_b32 {sM0}, {own}, 2", f"s_add_u32 {sM0}, {sM0}, {line}",
            f"buffer_store_dword {vr(T+7)}, {vr(vZero)}, {sWS}, {sM0} offen sc1 ;@nocount", "s_mov_b64 exec, -1", f"SIG{n}:"]
def flag_load(line):
    n = newlab()
    return n, [f"s_cmp_lg_u32 {sW}, 0", f"s_cbranch_scc1 FL{n}",
               f"buffer_load_dwordx4 {vr(T+2,4)}, {vr(vZero)}, {sWS}, {line} offen sc1", f"FL{n}:"]
def flag_check(n, line, cls, val):
    m = newlab()
    if cls is None: mn = [f"v_min_u32 {vr(T+6)}, {vr(T+2)}, {vr(T+3)}", f"v_min3_u32 {vr(T+6)}, {vr(T+6)}, {vr(T+4)}, {vr(T+5)}"]
    else: mn = [f"v_min_u32 {vr(T+6)}, {vr(T+2+cls)}, {vr(T+4+cls)}"]
    ld = [f"buffer_load_dwordx4 {vr(T+2,4)}, {vr(vZero)}, {sWS}, {line} offen sc1 ;@nocount", "s_waitcnt vmcnt(0) ;@nocount"]
    o = [f"s_cmp_lg_u32 {sW}, 0", f"s_cbranch_scc1 CE{m}", f"s_mov_b32 {sT3}, 0x20000"]
    o += [f"@waitmark m{n}"] if n is not None else ld
    o += [f"CL{m}:"] + mn + ["s_nop 0", f"v_readfirstlane_b32 {sM0}, {vr(T+6)}", "s_nop 0", f"s_cmp_ge_u32 {sM0}, {val}",
          f"s_cbranch_scc1 CE{m}", f"s_sleep {OPT['sleep']}"] + ld + [f"s_sub_u32 {sT3}, {sT3}, 1", f"s_cbranch_scc0 CL{m}", f"CE{m}:"]
    return o

def q_phase(p, park, nxt, sig, wqstep, firstq, stages=None, chk=None, fillers=()):
    QF = [aPool, aPool + 24]
    dq8 = aPark + 32 if park else aQ8
    def reads(i, s):
        f = QF[(4*i + s) & 1]
        xo = XSLOT[i % 3] - XBASE
        wo = WSLOT[i % 3] - WBASE + s * 4096
        r = [f"ds_read_b128 {ar(f,4)}, {vr(aX+s)} offset:{xo}"]
        def w(dl): return [f"ds_read_b64_tr_b16 {ar(f+8+4*dl+2*u,2)}, {vr(aWQ+dl)} offset:{wo+u*1024}" for u in range(2)]
        return r + w(0) + [f"ds_read_b128 {ar(f+4,4)}, {vr(aX8+s)} offset:{xo}"] + w(1) + w(2) + w(3)
    p("@waitvm q0")
    if firstq:
        n = newlab()
        p(f"""s_lshl_b32 {sT0}, {sG}, 2
        s_add_u32 {sT0}, {sT0}, {sJ}
        s_lshl_b32 {sT0}, {sT0}, 2
        s_add_u32 {sT0}, {sT0}, {sW}
        s_cmp_lg_u32 {sT0}, 3
        s_cbranch_scc1 NOPUB{n}
        s_mov_b64 exec, 1
        v_mov_b32 {vr(T+7)}, 1
        global_store_dword {vr(vInit)}, {vr(T+7)}, {sDBG} sc1 ;@nocount
        s_mov_b64 exec, -1
        NOPUB{n}:""")
    p("s_barrier")
    p.ext(st(True))
    p.ext(reads(0, 0))
    mf = []; ds = {}; misc = {}
    fl = None
    for i in range(9):
        base = len(mf)
        if nxt == 'P' and i == 7:
            fl, code = flag_load(sFlG); misc.setdefault(base - 1, []).extend(code)
        for s in range(4):
            f = QF[(4*i + s) & 1]
            first = (i == 0 and s == 0)
            def mm(acc, a, b):
                mf.append(f"v_mfma_f32_32x32x16_bf16 {vr(acc,16)}, {ar(a,4)}, {ar(b,4)}, {'0' if first else vr(acc,16)}")
            g0 = len(mf)
            mm(O, f+8, f); mm(S, f+8, f+4); mm(O+16, f+12, f); mm(O+32, f+16, f); mm(O+48, f+20, f)
            stt = g0
            if s < 3: r = reads(i, s+1)
            elif i < 8:
                r = reads(i+1, 0); stt = g0 + 1
                tags = f"q{i+1}" + (",ost" if (sig and i == 0) else "")
                pre = flag_check(fl, sFlG, *chk) if (nxt == 'P' and i == 7) else []
                ds.setdefault(stt, []).extend(pre + [f"@waitvm {tags} lgkmcnt(0)", "s_barrier"] + st(True))
                if sig and i == 0: misc.setdefault(stt + 3, []).extend(signal(sig))
            else: r = []
            for k, (a, b) in enumerate(((0,3),(3,6),(6,8),(8,10))):
                ds.setdefault(stt + k, []).extend(r[a:b])
        gaps = list(range(base, base + 15))
        if i <= 6: g = q_dma((i + 2) % 3, f"q{i+2}")
        elif nxt == 'Q': g = q_dma(i - 7, f"q{i-7}")
        elif nxt == 'A': g = u_dma(i - 7)
        else:
            g = wo_dma(stages[0], 0) if i == 7 else p_pre3(stages) + wo_dma(stages[1], 1)
            if i == 8: gaps = list(range(base, base + 20))
        if i == 7: g = [[f"s_add_u32 {sWQbase}, {sWQbase}, {wqstep & 0xffffffff}"]] + g
        spread(g, gaps, misc)
    p.ext(weave(mf, ds, misc, [(t, 0, 138) for t in fillers]))
    p("s_nop 7")
    p.ext(st(True))
    for j in range(0, 16, 2):
        p(f"v_pk_mul_f32 {vr(S+j,2)}, {vr(S+j,2)}, s[4:5] op_sel_hi:[1,0]")
    for j in range(8):
        p(f"v_cvt_pk_bf16_f32 {vr(S+16+j)}, {vr(S+2*j)}, {vr(S+2*j+1)}")
    p("s_mov_b32 exec_lo, 0xffff")
    p("s_mov_b32 exec_hi, 0xffff")
    p(f"ds_write_b128 {vr(vQ8w)}, {vr(S+16,4)}")
    p(f"ds_write_b128 {vr(vQ8w)}, {vr(S+20,4)} offset:512")
    p("s_mov_b64 exec, -1")
    for j in range(0, 64, 2):
        p(f"v_pk_mul_f32 {vr(O+j,2)}, {vr(O+j,2)}, s[4:5] op_sel_hi:[1,0]")
    for j in range(32):
        p(f"v_cvt_pk_bf16_f32 {vr(QR+j)}, {vr(O+2*j)}, {vr(O+2*j+1)}")
    if park:
        for j in range(32): p(f"v_accvgpr_write_b32 {ar(aPark+j)}, {vr(QR+j)}")
    if firstq:
        n = newlab()
        p(f"""s_cmp_lg_u32 {sW}, 0
        s_cbranch_scc1 NORD{n}
        global_load_dword {vr(vInit+1)}, {vr(vInit)}, {sDBG} sc1 ;@nocount
        NORD{n}:""")
    p(f"v_add_u32 {vr(T)}, {Q8BUF}, {vr(vLin)}")
    p("@waitvm u0 lgkmcnt(0)" if nxt == 'A' else "s_waitcnt lgkmcnt(0)")
    p("s_barrier")
    for s in range(4):
        p(f"ds_read_b128 {ar(dq8+4*s,4)}, {vr(T)} offset:{s*1024}")

slow_code = []
def a_phase(p, inst, prev, nxt, sig, stages=None, chk=None, extra=None):
    LA = int(OPT.get('la', 9)); GRP = int(OPT.get('grp', 3))
    mf = []; frag = []; stepstart = {}; qk8end = {}
    ds = {}; misc = {}
    def add(text_fn, reads_fn):
        f = aPool + 4 * (len(mf) % NPOOL)
        mf.append(text_fn(f)); frag.append(reads_fn(f))
    def qk(t, sl):
        sb = S + 16 * (t & 1)
        c = vr(NEGM, 16) if sl == 0 else vr(sb, 16)
        off = ((t >> 1) % 4) * 16384 + (t & 1) * 8192
        add(lambda f: f"v_mfma_f32_32x32x16_bf16 {vr(sb,16)}, {ar(f,4)}, {vr(QR+4*sl,4)}, {c}",
            lambda f: [f"ds_read_b128 {ar(f,4)}, {vr(aK+sl)} offset:{off}"])
    def pv(t, k):
        tp, D = k >> 2, k & 3
        c = "0" if (t == 0 and tp == 0) else vr(O + 16*D, 16)
        off = ((t >> 1) % 4) * 16384 + (t & 1) * 8192 + tp * 4096
        add(lambda f: f"v_mfma_f32_32x32x16_bf16 {vr(O+16*D,16)}, {ar(f,4)}, {vr(P+8*(t&1)+4*tp,4)}, {c}",
            lambda f: [f"ds_read_b64_tr_b16 {ar(f+2*u,2)}, {vr(aV+D)} offset:{off+u*2048}" for u in range(2)])
    def qk8(m, k):
        kt, sp = k >> 2, k & 3
        c = vr(NEGM8, 4) if sp == 0 else vr(S8 + 4*kt, 4)
        off = (m & 1) * 32768 + kt * 4096
        add(lambda f: f"v_mfma_f32_16x16x32_bf16 {vr(S8+4*kt,4)}, {ar(f,4)}, {ar(aQ8+4*sp,4)}, {c}",
            lambda f: [f"ds_read_b128 {ar(f,4)}, {vr(aK8+sp)} offset:{off}"])
    def pv8(m, D):
        c = "0" if m == 0 else ar(aO8 + 4*D, 4)
        off = (m & 1) * 32768
        add(lambda f: f"v_mfma_f32_16x16x32_bf16 {ar(aO8+4*D,4)}, {ar(f,4)}, {vr(P8,4)}, {c}",
            lambda f: [f"ds_read_b64_tr_b16 {ar(f+2*u,2)}, {vr(aV8+D)} offset:{off+u*4096}" for u in range(2)])
    for u in range(-1, 17):
        stepstart[u] = len(mf)
        seq = []
        for k in range(9):
            if 0 <= u + 1 <= 15 and k < 8: seq.append((qk, u + 1, k))
            if 0 <= u - 1 <= 15 and k >= 1: seq.append((pv, u - 1, k - 1))
        ex = []
        if u >= 1 and u % 4 == 1 and u <= 13: ex = [(qk8, u // 4, k) for k in range(8)]
        if u >= 4 and u % 4 == 0: ex = [(pv8, u // 4 - 1, k) for k in range(8)]
        merged = []
        for k, it in enumerate(seq):
            merged.append(it)
            if ex and k >= (0 if u == 16 else 1): merged.append(ex.pop(0))
        merged += ex
        for fn, a, b in merged:
            if fn is qk8: qk8end[a] = len(mf)
            fn(a, b)
    stepstart[17] = len(mf)
    n = len(mf)
    bar = {}
    fl = None
    for e in range(1, 9):
        g = stepstart[2*e - 1] - LA
        bar[e] = g
        tags = f"u{e}" + (",ost" if (sig and e == 1) else "")
        pre = []
        if nxt == 'P' and e == 7:
            fl, code = flag_load(sFlG); misc.setdefault(g + 1, []).extend(code)
        if nxt == 'P' and e == 8: pre = flag_check(fl, sFlG, *chk)
        ds.setdefault(g, []).extend(pre + [f"@waitvm {tags}" + (" lgkmcnt(4)" if e == 8 else ""), "s_barrier"] + st(True))
    bar[0] = -1; bar[9] = n - 2
    pre = []
    for i in range(n):
        if i - LA < 0: pre += frag[i]
        else: ds.setdefault(i - LA, []).extend(frag[i])
    ds.setdefault(n - 4, []).extend(["s_waitcnt lgkmcnt(0)", "s_barrier"])
    for e in range(0, 9):
        gaps = list(range(bar[e] + 1, bar[e+1]))
        if e <= 6: g = u_dma(e + 2)
        elif nxt == 'P': g = wo_dma(stages[0], 0) + p_pre3(stages) if e == 8 else []
        elif nxt == 'A': g = ([kv_reset(131072)] if e == 7 else []) + u_dma(e - 7)
        else: g = q_dma(e - 7, f"q{e-7}")
        if extra and e in extra: g = g + extra[e]
        if g: spread(g, gaps, misc)
    ops = []
    def smx(sb, pb, l, cnt, lo, hi):
        b = len(ops)
        for j in range(cnt): ops.append(dict(text=f"v_exp_f32 {vr(sb+j)}, {vr(sb+j)}", lo=lo, hi=hi, deps=[], pri=j))
        for j in range(cnt): ops.append(dict(text=f"v_add_f32 {vr(l)}, {vr(l)}, {vr(sb+j)}", lo=lo, hi=hi, deps=[b+j], pri=j+2.5))
        for j in range(0, cnt, 2):
            ops.append(dict(text=f"v_cvt_pk_bf16_f32 {vr(pb+j//2)}, {vr(sb+j)}, {vr(sb+j+1)}", lo=lo, hi=hi, deps=[b+j, b+j+1], pri=j+2.4))
    for u in range(0, 16):
        smx(S + 16*(u&1), P + 8*(u&1), L, 16, stepstart[u] + (3 if u == 0 else int(OPT.get('lo', 0))), stepstart[u+1] - 1)
        if u % 4 == 1: smx(S8, P8, L8, 8, qk8end[u//4] + 3, stepstart[u+3] - 1)
    for j in range(16): p(f"v_mov_b32 {vr(NEGM+j)}, 0")
    for j in range(4): p(f"v_mov_b32 {vr(NEGM8+j)}, 0")
    p(f"s_mov_b32 {sRetry}, 0")
    if prev != 'Q':
        p("@waitvm u0")
        p("s_barrier")
    if prev == 'P2':
        for g in u_dma(1)[4:]: p.ext(g)
    p(f"ATT{inst}:")
    p(f"s_mov_b32 {sStage}, {sStage0}")
    p(f"v_mov_b32 {vr(L)}, 0")
    p(f"v_mov_b32 {vr(L8)}, 0")
    W = fill_valu(auto_lgkm(pre + weave(mf, ds, misc, []), group=GRP), ops)
    W = [x.strip() for x in W]
    if sig:
        k = W.index("s_barrier")
        m = newlab()
        W = W[:k+1] + [f"s_cmp_lg_u32 {sRetry}, 0", f"s_cbranch_scc1 SKP{m}"] + signal(sig) + [f"SKP{m}:"] + W[k+1:]
    p.ext(W)
    if nxt == 'P':
        for g in wo_dma(stages[1], 1): p.ext(g)
    p.ext(st(True))
    t = T
    p(f"""v_mov_b32 {vr(t)}, {vr(L)}
    v_mov_b32 {vr(t+1)}, {vr(L8)}
    s_lshl_b32 {sT1}, {sW4096}, 1
    s_add_u32 {sT1}, {sT1}, {MRG}
    v_permlane32_swap_b32 {vr(L)}, {vr(t)}
    v_permlane16_swap_b32 {vr(L8)}, {vr(t+1)}
    v_add_f32 {vr(L)}, {vr(L)}, {vr(t)}
    v_add_f32 {vr(L8)}, {vr(L8)}, {vr(t+1)}
    v_rcp_f32 {vr(t+2)}, {vr(L)}
    v_mov_b32 {vr(t+1)}, {vr(L8)}
    s_mov_b32 {sT0}, 0x4e800000
    s_mov_b32 {sT2}, 0x30800000
    v_permlane32_swap_b32 {vr(L8)}, {vr(t+1)}
    v_add_f32 {vr(L8)}, {vr(L8)}, {vr(t+1)}
    v_cmp_nge_f32 vcc, {sT0}, {vr(L)}
    v_cmp_nle_f32 {sM}, {sT2}, {vr(L)}
    v_add_u32 {vr(t+3)}, {sT1}, {vr(vLin)}
    s_or_b64 {sM}, vcc, {sM}
    v_cmp_nge_f32 vcc, {sT0}, {vr(L8)}
    s_lshr_b32 {sT1}, {sW4096}, 1
    s_add_u32 {sT1}, {sT1}, {MRG}
    s_or_b64 vcc, vcc, {sM}
    s_cselect_b32 {sT0}, 1, 0
    v_add_u32 {vr(t+4)}, {sT1}, {vr(vLin)}
    v_mov_b32 {vr(t+1)}, {sT0}""")
    for D in range(8):
        p(f"ds_write_b128 {vr(t+3)}, {ar(aO8+4*D,4)} offset:{D*1024}")
    p(f"ds_write_b32 {vr(vL8w)}, {vr(L8)}")
    p(f"ds_write_b32 {vr(vL8w)}, {vr(t+1)} offset:256")
    p(f"s_lshl_b32 {sWQoff}, {sW4096}, 1")
    p(f"s_add_u32 {sWQoff}, {sWQoff}, {sOst}")
    def norm(D):
        o = O + 16 * D
        for j in range(0, 16, 2):
            p(f"v_pk_mul_f32 {vr(o+j,2)}, {vr(o+j,2)}, {vr(t+2,2)} op_sel_hi:[1,0]")
        for jj in range(2):
            d = S + 8 * D + 4 * jj
            for k, src in enumerate((4*jj, 4*jj+2, 8+4*jj, 8+4*jj+2)):
                p(f"v_cvt_pk_bf16_f32 {vr(d+k)}, {vr(o+src)}, {vr(o+src+1)}")
            p(f"buffer_store_dwordx4 {vr(d,4)}, {vr(vOst)}, {sWS}, {sWQoff} offen offset:{D*1024+jj*512} {OST} ;@tag=ost")
    norm(0); norm(1)
    if inst[1] == '0':
        m = newlab()
        p(f"""s_cmp_lg_u32 {sW}, 0
        s_cbranch_scc1 INITE{m}
        s_mov_b32 {sT1}, 0x20000
        INITL{m}:
        v_readfirstlane_b32 {sT0}, {vr(vInit+1)}
        s_nop 0
        s_cmp_lg_u32 {sT0}, 0
        s_cbranch_scc1 INITE{m}
        global_load_dword {vr(vInit+1)}, {vr(vInit)}, {sDBG} sc1 ;@nocount
        s_waitcnt vmcnt(0) ;@nocount
        s_sub_u32 {sT1}, {sT1}, 1
        s_cbranch_scc0 INITL{m}
        INITE{m}:""")
    p.ext(st(True))
    p("s_waitcnt lgkmcnt(0)")
    p("s_barrier")
    M = O
    for v in range(4):
        p(f"ds_read_b128 {vr(M+8*v,4)}, {vr(t+4)} offset:{v*8192}")
        p(f"ds_read_b128 {vr(M+8*v+4,4)}, {vr(t+4)} offset:{v*8192+1024}")
    p(f"ds_read_b128 {vr(P,4)}, {vr(vL8r)}")
    p(f"ds_read_b128 {vr(P+4,4)}, {vr(vL8r)} offset:256")
    norm(2); norm(3)
    p(f"""v_add_f32 {vr(P)}, {vr(P)}, {vr(P+1)}
    v_add_f32 {vr(P+2)}, {vr(P+2)}, {vr(P+3)}
    v_or_b32 {vr(P+4)}, {vr(P+4)}, {vr(P+5)}
    v_add_f32 {vr(P)}, {vr(P)}, {vr(P+2)}
    v_or3_b32 {vr(P+4)}, {vr(P+4)}, {vr(P+6)}, {vr(P+7)}
    v_cmp_nle_f32 vcc, {sT2}, {vr(P)}
    v_cmp_ne_u32 {sM}, 0, {vr(P+4)}
    v_rcp_f32 {vr(P+2)}, {vr(P)}
    s_lshr_b32 {sT1}, {sW4096}, 2
    s_add_u32 {sT1}, {sT1}, {sOst}
    s_or_b64 vcc, vcc, {sM}
    s_cselect_b32 {sT0}, 1, 0
    s_cmp_gt_u32 {sT0}, {sRetry}
    s_cbranch_scc1 SLOW{inst}""")
    for j in range(8):
        p(f"v_add_f32 {vr(M+j)}, {vr(M+j)}, {vr(M+8+j)}")
        p(f"v_add_f32 {vr(M+16+j)}, {vr(M+16+j)}, {vr(M+24+j)}")
    for j in range(8): p(f"v_add_f32 {vr(M+j)}, {vr(M+j)}, {vr(M+16+j)}")
    for j in range(8): p(f"v_mul_f32 {vr(M+j)}, {vr(M+j)}, {vr(P+2)}")
    for j in range(4): p(f"v_cvt_pk_bf16_f32 {vr(M+j)}, {vr(M+2*j)}, {vr(M+2*j+1)}")
    p(f"""s_add_u32 {sT1}, {sT1}, 32768
    buffer_store_dwordx4 {vr(M,4)}, {vr(vLin)}, {sWS}, {sT1} offen {OST} ;@tag=ost
    s_add_u32 {sPair}, {sPair}, 131072
    s_add_u32 {sOst}, {sOst}, {OHEAD}""")
    if nxt != 'A': p.ext(kv_reset())
    else:
        for j in range(32): p(f"v_accvgpr_read_b32 {vr(QR+j)}, {ar(aPark+j)}")
        for j in range(16): p(f"v_accvgpr_mov_b32 {ar(aQ8+j)}, {ar(aPark+32+j)}")
    q = Prog()
    F = O; ln = vr(vLane)
    t0, t1, t2, t3, t4 = [vr(T+i) for i in range(5)]
    q(f"""SLOW{inst}:
    s_waitcnt vmcnt(0) lgkmcnt(0)
    s_barrier
    s_mov_b32 {sRetry}, 1
    v_and_b32 {t0}, 31, {ln}
    v_lshrrev_b32 {t1}, 5, {ln}
    v_lshlrev_b32 {t1}, 4, {t1}
    v_lshl_add_u32 {t0}, {t0}, 8, {t1}
    v_and_b32 {t2}, 15, {ln}
    v_lshrrev_b32 {t1}, 4, {ln}
    v_lshlrev_b32 {t1}, 4, {t1}
    v_lshl_add_u32 {t2}, {t2}, 8, {t1}
    v_mov_b32 {t3}, 0xff800000
    v_mov_b32 {t4}, 0xff800000
    s_mov_b32 {sT0}, {sPair}
    s_mov_b32 {sT2}, 0
    SLOWL{inst}:""")
    for sl in range(8):
        q(f"""s_lshl_b32 {sT1}, {sW}, 1
        s_add_u32 {sT1}, {sT1}, {sl}
        s_and_b32 {sT1}, {sT1}, 7
        s_lshl_b32 {sT1}, {sT1}, 5
        s_add_u32 {sT1}, {sT1}, {sT0}
        buffer_load_dwordx4 {vr(F+4*sl,4)}, {t0}, {sK}, {sT1} offen""")
    q("s_waitcnt vmcnt(0)")
    for sl in range(8):
        q(f"v_mfma_f32_32x32x16_bf16 {vr(S,16)}, {vr(F+4*sl,4)}, {vr(QR+4*sl,4)}, {'0' if sl == 0 else vr(S,16)}")
    q("s_nop 4")
    q(f"s_add_u32 {sT1}, {sT0}, 4096")
    for kt in range(2):
        for sp in range(4):
            q(f"buffer_load_dwordx4 {vr(F+16*kt+4*sp,4)}, {t2}, {sK}, {sT0 if kt == 0 else sT1} offen offset:{sp*64}")
    q("s_waitcnt vmcnt(0)")
    for kt in range(2):
        for sp in range(4):
            q(f"v_mfma_f32_16x16x32_bf16 {vr(S8+4*kt,4)}, {vr(F+16*kt+4*sp,4)}, {ar(aQ8+4*sp,4)}, {'0' if sp == 0 else vr(S8+4*kt,4)}")
    q("s_nop 15")
    for j in range(0, 16, 2): q(f"v_max3_f32 {t3}, {t3}, {vr(S+j)}, {vr(S+j+1)}")
    for j in range(0, 8, 2): q(f"v_max3_f32 {t4}, {t4}, {vr(S8+j)}, {vr(S8+j+1)}")
    q(f"""s_add_u32 {sT0}, {sT0}, 8192
    s_add_u32 {sT2}, {sT2}, 1
    s_cmp_lt_u32 {sT2}, 16
    s_cbranch_scc1 SLOWL{inst}
    v_mov_b32 {t0}, {t3}
    v_mov_b32 {t1}, {t4}
    s_nop 1
    v_permlane32_swap_b32 {t3}, {t0}
    v_permlane16_swap_b32 {t4}, {t1}
    v_max_f32 {t3}, {t3}, {t0}
    v_max_f32 {t4}, {t4}, {t1}
    v_mov_b32 {t1}, {t4}
    s_nop 1
    v_permlane32_swap_b32 {t4}, {t1}
    v_max_f32 {t4}, {t4}, {t1}""")
    for j in range(16): q(f"v_sub_f32 {vr(NEGM+j)}, 0, {t3}")
    for j in range(4): q(f"v_sub_f32 {vr(NEGM8+j)}, 0, {t4}")
    q.ext(kv_reset())
    for g in u_dma(0) + u_dma(1): q.ext(g)
    q(f"""s_waitcnt vmcnt(0)
    s_barrier
    s_branch ATT{inst}""")
    slow_code.extend(q.L)

def p_seg(p, stages, first, nxt, sig, checks):
    aW = S; vO8 = S + 9; B8 = S + 12
    WP = O; NP = 6; LAF = 4
    NS = len(stages); NK = 4 * NS
    ln = vr(vLane); t0, t1 = vr(T), vr(T+1)
    p(f"""v_lshrrev_b32 {t0}, 2, {ln}
    v_mul_u32_u24 {t0}, 288, {t0}
    v_and_b32 {t1}, 3, {ln}
    v_lshl_add_u32 {t0}, {t1}, 3, {t0}
    s_lshl_b32 {sT1}, {sW}, 6
    v_add_u32 {t0}, {sT1}, {t0}
    v_add_u32 {vr(vO8)}, {O8SLOT}, {vr(vLin)}""")
    for i in range(9):
        if i < 3: p(f"v_add_u32 {vr(aW+i)}, {32*i}, {t0}")
        else:
            p(f"""s_cmp_ge_u32 {sW}, {(9 - i + 1) // 2}
            s_cselect_b32 {sT0}, {(-288) & 0xffffffff}, 0
            s_add_u32 {sT0}, {sT0}, {32*i}
            v_add_u32 {vr(aW+i)}, {sT0}, {t0}""")
    p.ext(st(True))
    p("@waitvm wo0 lgkmcnt(0)")
    p("s_barrier")
    p.ext(st(True))
    def freads(F):
        k, i = divmod(F, 9)
        f = WP + 4 * (F % NP)
        off = ((k % 16) % 7) * 9216
        r = [f"ds_read_b64_tr_b16 {vr(f+2*u,2)}, {vr(aW+i)} offset:{off+u*4608}" for u in range(2)]
        if i == 0: r.append(f"ds_read_b128 {vr(B8+4*(k&1),4)}, {vr(vO8)} offset:{(k%16)*1024}")
        return r
    for F in range(LAF): p.ext(freads(F))
    mf = []; ds = {}; misc = {}
    first_gap = {}; free = {}
    for k in range(NK):
        free[k] = []
        for i in range(9):
            F = 9 * k + i
            f = WP + 4 * (F % NP)
            first_gap[F] = len(mf)
            for r in ([0, 1, 2] if i < 3 else [0, 1]):
                acc = aPacc + (4 * (2*i + r) if r < 2 else 72 + 4*i)
                c = "0" if (first and k == 0) else ar(acc, 4)
                b = ar(aPark+8*(k%4)+4*r, 4) if r < 2 else vr(B8+4*(k&1), 4)
                mf.append(f"v_mfma_f32_16x16x32_bf16 {ar(acc,4)}, {vr(f,4)}, {b}, {c}")
                if r >= 1: free[k].append(len(mf) - 1)
                if r == 1 and i < 3: free[k].append(len(mf) - 1)
    marks = {}
    for n in checks:
        marks[n], code = flag_load(sFlG)
        misc.setdefault(free[4*n - 3][0], []).extend(code)
    for F in range(LAF, 9 * NK):
        g = first_gap[F - LAF]
        k, i = divmod(F, 9)
        if i == 0 and k % 4 == 0:
            n = k // 4
            pre = flag_check(marks[n], sFlG, *checks[n]) if n in checks else []
            tags = f"wo{n}" + (",ost" if (sig and n == 1) else "")
            ds.setdefault(g, []).extend(pre + [f"@waitvm {tags}" + (" lgkmcnt(0)" if (NS == 2 and nxt == 'A') else ""), "s_barrier"] + st(True))
            if sig and n == 1: misc.setdefault(g + 1, []).extend(signal(sig))
        ds.setdefault(g, []).extend(freads(F))
        if k % 16 in (6, 13): misc.setdefault(g + 1, []).append(f"v_add_u32 {vr(aW+i)}, {7*9216}, {vr(aW+i)}")
        if k % 16 == 15 and k + 1 < NK: misc.setdefault(g + 1, []).append(f"v_subrev_u32 {vr(aW+i)}, {14*9216}, {vr(aW+i)}")
    pf = {}
    for n in range(NS):
        g = o8_dma(stages[n+1], n + 1) if n + 1 < NS else []
        if n + 2 < NS: g2 = wo_dma(stages[n+2], n + 2)
        elif nxt == 'A' and NS == 2: g2 = u_dma(0) + u_dma(1)[:4] if n == 1 else []
        elif nxt == 'A': g2 = u_dma(n + 2 - NS)
        else: g2 = []
        pf[4*n] = g + g2[:3]
        g2 = g2[3:]
        for k in range(1, 4): pf[4*n + k] = g2[((k-1)*len(g2))//3:(k*len(g2))//3]
    for k in range(NK):
        g = (oloads(stages, k + LAO) if k + LAO < NK else []) + pf[k]
        if g: spread(g, free[k][1:-1], misc)
        if k + 1 < NK: misc.setdefault(free[k][-1], []).append(f"@waitvm o{k+1}")
    p("@waitvm o0")
    p.ext(st(True))
    p.ext(weave(mf, ds, misc, []))

def f_phase(G):
    p = Prog()
    ln = vr(vLane); t0, t1 = vr(T), vr(T+1)
    units = {g: [3*g + k for k in range(3) if 3*g + k <= 10] for g in range(4)}
    p(f"""FIN{G}:
    s_lshl_b32 {sT1}, {sBlk}, 3
    s_add_u32 {sT1}, {sT1}, {sB}
    s_lshl_b32 {sT1}, {sT1}, 2
    s_add_u32 {sT1}, {sT1}, {sJ}
    s_lshl_b32 {sT1}, {sT1}, 6
    s_add_u32 {sT1}, {sT1}, {sW}
    s_mul_i32 {sOldA}, {sT1}, 3072
    s_add_u32 {sOldA}, {sOldA}, {PART}""")
    tb = 0
    for d in range(1, 4):
        Gd = (G + d) % 4
        p(f"s_add_u32 {sT0}, {sOldA}, {(Gd*16 + G*4) * 3072}")
        for k, u in enumerate(units[Gd]):
            b = O + 12 * (tb % 4); tb += 1
            nreg = 8 if u < 10 else 4
            for j in range(nreg): p(f"v_accvgpr_read_b32 {vr(b+j)}, {ar(aPacc+8*u+j)}")
            for j in range(nreg // 2): p(f"v_cvt_pk_bf16_f32 {vr(b+8+j)}, {vr(b+2*j)}, {vr(b+2*j+1)}")
            p(f"buffer_store_dwordx4 {vr(b+8,4)}, {vr(vLin)}, {sWS}, {sT0} offen offset:{k*1024} sc1")
    AC = P; LD = O; vOut = S
    for k, u in enumerate(units[G]):
        for j in range(8 if u < 10 else 4): p(f"v_accvgpr_read_b32 {vr(AC+8*k+j)}, {ar(aPacc+8*u+j)}")
    p(f"""v_and_b32 {t0}, 15, {ln}
    v_mul_u32_u24 {t0}, 2304, {t0}
    v_lshrrev_b32 {t1}, 4, {ln}
    v_lshl_add_u32 {vr(vOut)}, {t1}, 3, {t0}
    s_mul_i32 {sT2}, {sB}, {144*2304}
    s_mul_i32 {sT1}, {sJ}, 288
    s_add_u32 {sT2}, {sT2}, {sT1}
    s_mul_i32 {sT1}, {sBlk}, 1152
    s_add_u32 {sT2}, {sT2}, {sT1}
    s_lshl_b32 {sT1}, {sW}, 6
    s_add_u32 {sT2}, {sT2}, {sT1}""")
    so = [sKoff, sVoff, sWQoff, sXoff, sStage, sXbase]
    tiles = []
    for k, u in enumerate(units[G]):
        for r in range(2 if u < 10 else 1):
            tiles.append((AC + 8*k + 4*r, so[len(tiles)], u if u < 9 else (u - 9) * 2 + r, r if u < 9 else None))
    if G < 3: p(f"s_mul_i32 {sT1}, {sW}, {32*2304}\ns_add_u32 {sT2}, {sT2}, {sT1}")
    for reg, s_, i, r in tiles:
        row = (16 * r if r is not None else 128) * 2304
        if i >= 3:
            p(f"""s_cmp_ge_u32 {sW}, {(9 - i + 1) // 2}
            s_cselect_b32 {sT0}, {(-288) & 0xffffffff}, 0
            s_add_u32 {sT0}, {sT0}, {32*i + row}
            s_add_u32 {s_}, {sT2}, {sT0}""")
        else: p(f"s_add_u32 {s_}, {sT2}, {32*i + row}")
        if r is None and i == 2:
            p(f"s_cmp_eq_u32 {sW}, 3\ns_cselect_b32 {s_}, {s_}, 0x40000000")
    p(f"s_add_u32 {sOldA}, {sOldA}, {G*16*3072}")
    p.ext(st(True))
    p("s_waitcnt vmcnt(0)")
    p.ext(st(True))
    m = newlab()
    p(f"""s_lshl_b32 {sT0}, {sW}, 4
    s_add_u32 {sFlS}, {sFlS}, {sT0}
    s_add_u32 {sM0}, {sFlS}, {4*G}
    s_mov_b64 exec, 1
    v_mov_b32 {vr(T+7)}, 1
    buffer_store_dword {vr(T+7)}, {vr(vZero)}, {sWS}, {sM0} offen sc1 ;@nocount
    s_mov_b64 exec, -1
    s_mov_b32 {sT3}, 0x20000
    CL{m}:
    buffer_load_dwordx4 {vr(T+2,4)}, {vr(vZero)}, {sWS}, {sFlS} offen sc1 ;@nocount
    s_waitcnt vmcnt(0) ;@nocount
    v_min_u32 {vr(T+6)}, {vr(T+2)}, {vr(T+3)}
    v_min3_u32 {vr(T+6)}, {vr(T+6)}, {vr(T+4)}, {vr(T+5)}
    s_nop 0
    v_readfirstlane_b32 {sM0}, {vr(T+6)}
    s_nop 0
    s_cmp_ge_u32 {sM0}, 1
    s_cbranch_scc1 CE{m}
    s_sleep {OPT['fsleep']}
    s_sub_u32 {sT3}, {sT3}, 1
    s_cbranch_scc0 CL{m}
    CE{m}:""")
    p.ext(st(True))
    srcs = [(G + d) % 4 for d in range(1, 4)]
    for k, u in enumerate(units[G]):
        for d, Gs in enumerate(srcs):
            p(f"s_add_u32 {sT0}, {sOldA}, {Gs*4*3072}")
            p(f"buffer_load_dwordx4 {vr(LD+12*k+4*d,4)}, {vr(vLin)}, {sWS}, {sT0} offen offset:{k*1024} sc1")
    p(f"s_mov_b32 {sT0}, 0xffff0000")
    ti = 0
    for k, u in enumerate(units[G]):
        for d in range(3):
            for j in range(4 if u < 10 else 2):
                x = LD + 12*k + 4*d + j
                p(f"v_lshlrev_b32 {t0}, 16, {vr(x)}")
                p(f"v_and_b32 {t1}, {sT0}, {vr(x)}")
                p(f"v_add_f32 {vr(AC+8*k+2*j)}, {vr(AC+8*k+2*j)}, {t0}")
                p(f"v_add_f32 {vr(AC+8*k+2*j+1)}, {vr(AC+8*k+2*j+1)}, {t1}")
        for r in range(2 if u < 10 else 1):
            reg, s_, _, _ = tiles[ti]; ti += 1
            p(f"v_cvt_pk_bf16_f32 {vr(reg)}, {vr(reg)}, {vr(reg+1)}")
            p(f"v_cvt_pk_bf16_f32 {vr(reg+1)}, {vr(reg+2)}, {vr(reg+3)}")
            p(f"buffer_store_dwordx2 {vr(reg,2)}, {vr(vOut)}, {sOUT}, {s_} offen")
    if STAMP:
        e = STB + 2 * (NST - 2)
        p(f"""s_waitcnt vmcnt(0)
        s_memtime s[{e}:{e+1}]
        s_memrealtime s[{e+2}:{e+3}]
        s_waitcnt lgkmcnt(0)
        s_lshl_b32 s3, s2, 2
        s_add_u32 s3, s3, {sW}
        s_lshl_b32 s3, s3, 7
        s_add_u32 s3, s3, {WSSIZE}
        s_mov_b32 s26, {WSSIZE + 262144}
        s_mov_b64 exec, 1""")
        if "delay" in OPT:
            a, b, wg = [int(x) for x in OPT["delay"].split(":")]
            n = newlab()
            p(f"""s_cmp_lg_u32 s2, {wg}
            s_cbranch_scc1 NOD{n}
            s_sub_u32 s5, s{STB+2*b}, s{STB+2*a}
            s_lshl_b32 s5, s5, 3
            s_add_u32 s5, s5, s{e+2}
            DL{n}:
            s_memrealtime s[6:7]
            s_waitcnt lgkmcnt(0)
            s_sub_u32 s6, s6, s5
            s_cmp_lt_i32 s6, 0
            s_cbranch_scc1 DL{n}
            NOD{n}:
            s_endpgm""")
        if "dbgst" in sys.argv:
            n = newlab()
            p(f"""v_mov_b32 v0, s{e+2}
            s_not_b32 s5, s{STB+2}
            v_mov_b32 v1, s5
            global_atomic_umax {vr(vZero)}, v0, {sDBG} sc1
            global_atomic_umax {vr(vZero)}, v1, {sDBG} offset:4 sc1
            s_lshl_b32 s5, s2, 2
            s_add_u32 s5, s5, {sW}
            s_and_b32 s6, s5, {0xffffffff - 256}
            s_cmp_lg_u32 s6, 0
            s_cbranch_scc1 NOD{n}
            s_lshr_b32 s5, s5, 8
            s_mul_i32 s5, s5, 28
            s_add_u32 s5, s5, 8
            v_mov_b32 v9, s5""")
            for k in range(7):
                src = STB + 2*(2+k) if k < 6 else e
                p(f"s_sub_u32 s6, s{src}, s{STB}\nv_mov_b32 v0, s6\nglobal_store_dword v9, v0, {sDBG} offset:{4*k}")
            p(f"NOD{n}:")
        for k in range(NST): p(f"v_mov_b32 v{k}, s{STB+2*k}")
        for k in range(0, 20, 4): p(f"buffer_store_dwordx4 v[{k}:{k+3}], {vr(vZero)}, {sWS}, s3 offen offset:{4*k}")
    p("s_endpgm")
    L_ = merge_waits(auto_lgkm(auto_vm(p.L)))
    return L_, len(check_hazards(L_))

def prologue(p):
    p(f"""s_cmp_ge_u32 s2, 256
    s_cbranch_scc1 K_END
    s_load_dwordx8 s[68:75], s[0:1], 0
    s_load_dwordx8 s[76:83], s[0:1], 40
    s_load_dwordx2 s[84:85], s[0:1], 32
    s_load_dwordx2 s[86:87], s[0:1], 72
    s_load_dwordx2 s[32:33], s[0:1], 80
    s_load_dwordx2 s[36:37], s[0:1], 88
    s_load_dwordx2 s[24:25], s[0:1], 96
    v_and_b32 {vr(vLane)}, 63, v0
    v_lshrrev_b32 v1, 6, v0
    s_and_b32 s3, s2, 7
    v_readfirstlane_b32 {sW}, v1
    s_lshr_b32 s4, s2, 3
    s_lshr_b32 {sBlk}, s3, 2
    s_and_b32 {sG}, s3, 3
    s_and_b32 {sB}, s4, 7
    s_lshr_b32 {sJ}, s4, 3
    s_lshl_b32 s5, {sJ}, 1
    s_lshl_b32 s3, {sG}, 3
    s_add_u32 s3, s3, s5
    s_add_u32 {sStage0}, s5, {sB}
    s_cmp_ge_u32 {sStage0}, 9
    s_cselect_b32 s5, 9, 0
    s_sub_u32 {sStage0}, {sStage0}, s5
    s_mov_b32 {sStage}, {sStage0}
    s_lshl_b32 {sW4096}, {sW}, 12
    s_mul_i32 {sXm0}, {sW}, 5120
    s_mul_i32 {sXbase}, {sB}, 165888
    s_and_b32 s5, {sJ}, 1
    s_add_u32 s5, s5, s3
    s_lshl_b32 {sWQbase}, s5, 8
    s_lshl_b32 s5, {sB}, 5
    s_add_u32 s5, s5, s3
    s_lshl_b32 {sPair}, s5, 17
    s_lshl_b32 s6, {sBlk}, 8
    s_add_u32 s5, s5, s6
    s_mul_i32 {sOst}, s5, {OHEAD}
    s_mov_b32 s10, 1327104
    s_mov_b32 s11, 0x20000
    s_mov_b32 s14, 33554432
    s_mov_b32 s15, 0x20000
    s_mov_b32 s18, 33554432
    s_mov_b32 s19, 0x20000
    s_mov_b32 s22, 4718592
    s_mov_b32 s23, 0x20000
    s_mov_b32 s26, {WSSIZE}
    s_mov_b32 s27, 0x20000
    s_mov_b32 s30, 4718592
    s_mov_b32 s31, 0x20000
    s_mov_b32 s34, 2654208
    s_mov_b32 s35, 0x20000""")
    ln = vr(vLane)
    t0, t1, t2, t3, t4, t5 = [vr(T+i) for i in range(6)]
    l16, l4, r32, hh, cc, rr = [vr(S8+i) for i in range(6)]
    g1, l7, l3 = [vr(S8+6+i) for i in range(3)]
    p(f"""v_and_b32 {l16}, 15, {ln}
    v_lshrrev_b32 {l4}, 4, {ln}
    v_and_b32 {l7}, 7, {ln}
    v_lshrrev_b32 {l3}, 3, {ln}
    v_lshlrev_b32 {t0}, 2, {l4}
    v_xor_b32 {t0}, {t0}, {l16}
    v_lshlrev_b32 {t0}, 4, {t0}
    s_lshl_b32 s3, {sW}, 4
    v_add_u32 {t1}, s3, {l4}
    v_lshl_add_u32 {vr(dWQ)}, {t1}, 13, {t0}""")
    for i in range(1, 4): p(f"v_add_u32 {vr(dWQ+i)}, {i*(32768-1024)}, {vr(dWQ)}")
    p(f"s_mul_i32 s3, {sW}, 5")
    p(f"v_mul_u32_u24 {t1}, 1152, {l3}")
    for i in range(5):
        p(f"""s_add_u32 s4, s3, {i}
        s_lshl_b32 s5, s4, 2
        s_mul_i32 s4, s4, 9216
        v_add_u32 {t0}, s5, {l4}
        v_and_b32 {t0}, 7, {t0}
        v_xor_b32 {t0}, {t0}, {l7}
        v_lshlrev_b32 {t0}, 4, {t0}
        s_sub_u32 s4, s4, {i*1024 if i < 4 else 0}
        v_add3_u32 {vr(dX+i)}, {t0}, {t1}, s4""")
    p(f"""s_lshl_b32 s6, {sBlk}, 3
    s_add_u32 s6, s6, {sB}
    s_lshl_b32 s3, s6, 10
    s_add_u32 s3, s3, {FLAGS}
    s_lshl_b32 s5, {sG}, 7
    s_add_u32 {sFlG}, s3, s5
    s_lshl_b32 s5, {sJ}, 7
    s_add_u32 {sFlS}, s3, s5
    s_add_u32 {sFlS}, {sFlS}, 512
    v_mov_b32 {vr(vZero)}, 0
    v_lshlrev_b32 {vr(vLin)}, 4, {ln}
    s_lshl_b32 s5, s6, 2
    s_add_u32 s5, s5, 64
    v_mov_b32 {vr(vInit)}, s5
    s_waitcnt lgkmcnt(0)
    s_cmp_eq_u32 {sBlk}, 0
    s_cselect_b64 s[8:9], s[68:69], s[76:77]
    s_cselect_b64 s[12:13], s[70:71], s[78:79]
    s_cselect_b64 s[16:17], s[72:73], s[80:81]
    s_cselect_b64 s[20:21], s[74:75], s[82:83]
    s_cselect_b64 s[28:29], s[84:85], s[86:87]""")
    if STAMP: p(f"s_memtime s[{STB}:{STB+1}]\ns_memrealtime s[{STB+2}:{STB+3}]")
    p(f"""s_lshl_b32 s5, {sG}, 2
    s_add_u32 s5, s5, {sJ}
    s_lshl_b32 s5, s5, 2
    s_add_u32 s5, s5, {sW}
    s_cmp_lg_u32 s5, 3
    s_cbranch_scc1 NOINIT
    v_mov_b32 v10, 0
    v_mov_b32 v11, 0
    v_mov_b32 v12, 0
    v_mov_b32 v13, 0
    buffer_store_dwordx4 v[10:13], {vr(vLin)}, {sWS}, s3 offen sc1 ;@nocount
    NOINIT:""")
    for g in q_dma(0, "q0"): p.ext(g)
    p(f"""v_and_b32 {r32}, 31, {ln}
    v_lshrrev_b32 {hh}, 5, {ln}
    v_and_b32 {cc}, 3, {ln}
    v_bfe_u32 {rr}, {ln}, 2, 2
    v_and_b32 {g1}, 1, {l4}
    v_and_b32 {t0}, 1, {cc}
    v_lshl_add_u32 {t0}, {g1}, 1, {t0}
    v_lshlrev_b32 {t0}, 4, {t0}
    v_lshrrev_b32 {t1}, 1, {cc}
    v_lshl_add_u32 {t2}, {t1}, 3, {t0}
    v_lshl_add_u32 {t0}, {hh}, 3, {rr}
    v_lshl_add_u32 {t3}, {t0}, 8, {t2}
    v_add_u32 {t3}, {WBASE}, {t3}""")
    for dl in range(4):
        p(f"""s_add_u32 s3, {sW}, {dl}
        s_and_b32 s3, s3, 3
        v_xor_b32 {t0}, s3, {rr}
        v_lshl_add_u32 {vr(aWQ+dl)}, {t0}, 6, {t3}""")
    p(f"""v_bfe_u32 {t1}, {r32}, 1, 3
    v_lshlrev_b32 {t3}, 7, {r32}
    v_add_u32 {t3}, {XBASE}, {t3}""")
    for s in range(4):
        p(f"""v_add_u32 {t0}, {2*s}, {hh}
        v_xor_b32 {t0}, {t0}, {t1}
        v_lshl_add_u32 {t0}, {t0}, 4, {t3}
        v_add_u32 {vr(aX+s)}, {sW4096}, {t0}
        v_add_u32 {vr(aX8+s)}, {128*128}, {t0}""")
    for g in q_dma(1, "q1"): p.ext(g)
    pp = p; p = Prog()
    for i in range(4):
        p(f"""v_add_u32 {t0}, {4*i}, {l4}
        v_xor_b32 {t0}, {t0}, {l16}
        v_lshlrev_b32 {t0}, 4, {t0}
        v_lshl_add_u32 {t0}, {l4}, 8, {t0}
        v_add_u32 {vr(dK+i)}, {sW4096}, {t0}""")
    p(f"""v_lshlrev_b32 {t0}, 2, {l4}
    v_xor_b32 {t0}, {t0}, {l16}
    v_lshlrev_b32 {t0}, 4, {t0}
    v_lshl_add_u32 {t0}, {l4}, 8, {t0}
    v_add_u32 {vr(dV)}, {sW4096}, {t0}
    v_xor_b32 {vr(dV+1)}, 32, {vr(dV)}
    v_xor_b32 {t0}, {g1}, {hh}
    v_lshlrev_b32 {t0}, 5, {t0}
    v_lshl_add_u32 {t2}, {cc}, 3, {t0}
    v_lshl_add_u32 {t0}, {hh}, 2, {rr}
    v_lshl_add_u32 {t3}, {t0}, 8, {t2}
    v_add_u32 {t3}, 65536, {t3}""")
    for D in range(4):
        p(f"""v_xor_b32 {t0}, {D}, {rr}
        v_lshl_add_u32 {vr(aV+D)}, {t0}, 6, {t3}""")
    p(f"v_lshlrev_b32 {t3}, 8, {r32}")
    for sl in range(8):
        p(f"""s_lshl_b32 s3, {sW}, 1
        s_add_u32 s3, s3, {sl}
        s_and_b32 s3, s3, 7
        s_lshl_b32 s3, s3, 1
        v_add_u32 {t0}, s3, {hh}
        v_xor_b32 {t0}, {t0}, {l16}
        v_lshl_add_u32 {vr(aK+sl)}, {t0}, 4, {t3}""")
    p(f"""s_lshl_b32 s3, {sW}, 13
    v_lshlrev_b32 {t3}, 8, {l16}
    v_add_u32 {t3}, s3, {t3}""")
    for sp in range(4):
        p(f"""v_add_u32 {t0}, {4*sp}, {l4}
        v_xor_b32 {t0}, {t0}, {l16}
        v_lshl_add_u32 {vr(aK8+sp)}, {t0}, 4, {t3}""")
    p(f"""v_lshl_add_u32 {t0}, {l4}, 2, {rr}
    v_and_b32 {t1}, 1, {cc}
    v_lshlrev_b32 {t1}, 3, {t1}
    v_lshl_add_u32 {t3}, {t0}, 8, {t1}
    s_add_u32 s3, s3, 65536
    v_add_u32 {t3}, s3, {t3}
    v_lshlrev_b32 {t0}, 2, {rr}
    v_lshl_add_u32 {t0}, {g1}, 1, {t0}
    v_lshrrev_b32 {t1}, 1, {cc}
    v_xor_b32 {t2}, {t0}, {t1}""")
    for D in range(8):
        p(f"""v_xor_b32 {t0}, {2*D}, {t2}
        v_lshl_add_u32 {vr(aV8+D)}, {t0}, 4, {t3}""")
    p(f"""v_lshl_add_u32 {t0}, {hh}, 4, {r32}
    s_lshl_b32 s3, {sW}, 10
    s_add_u32 s3, s3, {Q8BUF}
    v_lshl_add_u32 {vr(vQ8w)}, {t0}, 4, s3
    v_lshlrev_b32 {t0}, 4, {l16}
    v_lshl_add_u32 {t1}, {g1}, 12, {t0}
    v_lshl_add_u32 {vr(vOst)}, {hh}, 8, {t1}
    v_add_u32 {vr(vL8r)}, {L8BUF}, {t0}
    s_lshl_b32 s3, {sW}, 2
    v_add_u32 {vr(vL8w)}, s3, {vr(vL8r)}
    s_mul_i32 s3, {sW}, {32*1152}
    s_movk_i32 s7, 3641""")
    for i in range(9):
        p(f"""v_add_u32 {t0}, {64*i}, {ln}
        v_mul_u32_u24 {t1}, s7, {t0}
        v_lshrrev_b32 {t1}, 16, {t1}
        v_mul_u32_u24 {t2}, {1152-288}, {t1}
        v_lshl_add_u32 {t0}, {t0}, 4, {t2}
        s_sub_u32 s5, s3, {(i%4)*1024}
        v_add_u32 {vr(dWO+i)}, s5, {t0}""")
    p(f"""s_mul_i32 {sWOm0}, {sW}, 9216
    s_mul_i32 {sWObase}, {sG}, {8*WHEAD}
    s_mul_i32 s3, {sJ}, 288
    s_add_u32 {sWObase}, {sWObase}, s3
    s_and_b32 {sRb}, {sB}, 1
    s_lshr_b32 {sRj}, {sJ}, 1
    s_lshl_b32 s3, {sBlk}, 3
    s_add_u32 s3, s3, {sB}
    s_lshl_b32 s3, s3, 2
    s_add_u32 s3, s3, {sG}
    s_mul_i32 {sObase}, s3, {8*OHEAD}
    s_mov_b32 {sScale}, 0x3e0293ee""")
    p.ext(kv_reset())

    return p.L

def warm_groups():
    ln = vr(vLane); a0, a1 = vr(T), vr(T+1)
    return [[f"s_lshl_b32 {sT0}, {sG}, 3", f"s_add_u32 {sT0}, {sT0}, {sB}"], [f"s_lshl_b32 {sT0}, {sT0}, 2", f"s_add_u32 {sT0}, {sT0}, {sJ}"],
            [f"s_lshl_b32 {sT0}, {sT0}, 2", f"s_add_u32 {sT0}, {sT0}, {sW}"], [f"s_mul_i32 {sT0}, {sT0}, 9216", f"v_lshlrev_b32 {a0}, 7, {ln}"],
            [f"v_and_b32 {a1}, 0x3ff, {a0}"],
            [f"buffer_load_dword {vr(255)}, {a0}, {sWO}, {sT0} offen ;@dummy", f"s_add_u32 {sT0}, {sT0}, 8192"],
            [f"buffer_load_dword {vr(255)}, {a1}, {sWO}, {sT0} offen ;@dummy"]]
def touch_groups():
    return [[f"s_mul_i32 {sT0}, {sB}, {144*2304}", f"buffer_load_dword {vr(255)}, {vr(vZero)}, {sOUT}, {sT0} offen ;@dummy"],
            [f"buffer_load_dword {vr(255)}, {vr(vZero)}, {sWS}, {sOst} offen ;@dummy"],
            [f"s_lshl_b32 {sT0}, {sBlk}, 3", f"s_add_u32 {sT0}, {sT0}, {sB}"], [f"s_mul_i32 {sT0}, {sT0}, {4*64*3072}", f"s_add_u32 {sT0}, {sT0}, {PART}"],
            [f"buffer_load_dword {vr(255)}, {vr(vZero)}, {sWS}, {sT0} offen ;@dummy"]]

def program(pro, fill, sg):
    p = Prog(); p.L = list(pro)
    n0 = len(p.L)
    nstamp[0] = 2
    def ph(name):
        cur[0] = name; p.ext(st(True))
    def end(): p.ext(st()); p.ext(st(True))
    ex = {}
    if 'a' in OPT["warm"]: ex = {1: warm_groups(), 3: touch_groups()}
    if 't' in OPT["warm"]: ex = {3: touch_groups()}
    if sg == 0:
        allp = [(0,0,0,sRb), (0,0,1,sRb), (1,0,0,sRb), (1,0,1,sRb), (1,1,0,sRb), (1,1,1,sRb), (0,1,0,sRj), (0,1,1,sRj)]
        m = int(OPT["m"])
        Pa, Pb = allp[:m], allp[m:]
        ph("Q0"); q_phase(p, False, 'A', 0, 256, True, fillers=fill); end()
        ph("A0"); a_phase(p, "00", 'Q', 'Q', 0, extra=ex); end()
        ph("Q1"); q_phase(p, False, 'P', 1, 0, False, Pa, (0, 1)); end()
        ph("P0"); p_seg(p, Pa, True, 'A', 0, {1: (1, 1)} if m == 4 else {}); end()
        if m == 4:
            ph("A1"); a_phase(p, "01", 'P', 'P', 0, Pb, (1, 2)); end()
            ph("P1"); p_seg(p, Pb, False, 'F', 2, {2: (0, 2)}); end()
        else:
            ph("A1"); a_phase(p, "01", 'P2', 'P', 0, Pb, (1, 1)); end()
            ph("P1"); p_seg(p, Pb, False, 'F', 2, {1: (1, 2), 4: (0, 2)}); end()
    else:
        Pa = [(0,0,0,sRb), (0,0,1,sRb), (1,0,0,sRb), (1,0,1,sRb), (1,1,0,sRj), (1,1,1,sRj), (0,1,0,sRb), (0,1,1,sRb)]
        ph("Q0"); q_phase(p, True, 'Q', 0, -256, True, fillers=fill); end()
        ph("Q1"); q_phase(p, False, 'A', 0, 0, False); end()
        ph("A0"); a_phase(p, "10", 'Q', 'A', 0, extra=ex); end()
        ph("A1"); a_phase(p, "11", 'A', 'P', 1, Pa, (None, 1)); end()
        ph("P0"); p_seg(p, Pa, True, 'F', 2, {4: (1, 2), 5: (0, 2)}); end()
        p.ext(st())
    p(f"""s_cmp_eq_u32 {sG}, 0
    s_cbranch_scc1 FIN0
    s_cmp_eq_u32 {sG}, 1
    s_cbranch_scc1 FIN1
    s_cmp_eq_u32 {sG}, 2
    s_cbranch_scc1 FIN2
    s_branch FIN3""")
    mark = "BODY_MARK:"
    L_ = p.L[:n0] + [mark] + p.L[n0:]
    L_ = merge_waits(auto_lgkm(auto_vm(L_)))
    bad = check_hazards(L_)
    k = L_.index(mark)
    return L_[:k], L_[k+1:], len(bad)

def main():
    pro = Prog(); fill = [x.strip() for x in prologue(pro)]
    h0, b0, n0 = program(pro.L, fill, 0)
    h1, b1, n1 = program(pro.L, fill, 1)
    assert h0 == h1
    slow = auto_lgkm(slow_code)
    n2 = len(check_hazards(slow))
    fin = []
    cur[0] = "F0"
    for G in range(4):
        nstamp[0] = 2 if OPT["smode"] == "F0" else 8
        if OPT["smode"] not in ("", "F0"): nstamp[0] = 99
        f, n = f_phase(G); fin += f; n2 += n
    body = h0 + [f"s_bitcmp1_b32 {sJ}, 0", "s_cbranch_scc1 PROG1J", "s_branch PROG0", "PROG1J:", "s_branch PROG1",
                 "K_END:", "s_endpgm", "PROG0:"] + b0 + slow[:len(slow)//2] + fin + slow[len(slow)//2:] + ["PROG1:"] + b1
    body = strip(body)
    kn = NAME + "_kernel"
    hdr = open('cdna_kernels/' + NAME + '.s.ref').read().split('; Override launch')[0]
    s = hdr + "; @launch grid=(256,1,1) block=(256,1,1) lds=163840\n"
    s += f'.amdgcn_target "amdgcn-amd-amdhsa--gfx950"\n.text\n.globl {kn}\n.p2align 8\n.type {kn},@function\n{kn}:\n' + "\n".join(body) + "\n"
    s += f""".section .rodata,"a"
.p2align 6
.amdhsa_kernel {kn}
  .amdhsa_next_free_vgpr {NV + NA}
  .amdhsa_next_free_sgpr 102
  .amdhsa_accum_offset {NV}
  .amdhsa_group_segment_fixed_size 0
  .amdhsa_kernarg_size 104
  .amdhsa_user_sgpr_count 2
  .amdhsa_user_sgpr_kernarg_segment_ptr 1
  .amdhsa_system_sgpr_workgroup_id_x 1
.end_amdhsa_kernel
"""
    fn = OPT.get("out", "cdna_kernels/" + NAME + ".s")
    open(fn, "w").write(s)
    print("written", fn, "lines", len(body), "bytes", len(s), "hazards:", n0 + n1 + n2)
main()
```

```python
import sys
from asmlib import *

NAME = "concat_heads__mha_block_cached__mha_block_cached__near_ridge"
OPT = dict(kv="nt", w="", ost="sc1", old="sc1", smode="", warm="a", sleep="4", fsleep="1", m="2")
for a in sys.argv[1:]:
    if "=" in a:
        k, v = a.split("=", 1); OPT[k] = v.replace("+", " ")
KV_FLAGS, W_FLAGS, OST, OLD = OPT["kv"], OPT["w"], OPT["ost"], OPT["old"]
STAMP = "stamp" in sys.argv

def vr(b, n=1): return f"v{b}" if n == 1 else f"v[{b}:{b+n-1}]"
def ar(b, n=1): return f"a{b}" if n == 1 else f"a[{b}:{b+n-1}]"
K = 1024
OHEAD = 36864
WHEAD = 128 * 1152
OSIZE = 512 * OHEAD
PART = OSIZE
PSIZE = 64 * 64 * 3 * 1024
FLAGS = OSIZE + PSIZE
WSSIZE = FLAGS + 16384
sX, sK, sV, sWQ, sWS, sWO, sOUT, sDBG = "s[8:11]", "s[12:15]", "s[16:19]", "s[20:23]", "s[24:27]", "s[28:31]", "s[32:35]", "s[36:37]"
names = ("sW sW4096 sXm0 sPair sKoff sVoff sWQoff sXoff sStage sB sBlk sG sJ sXbase sWQbase sOst sRetry sStage0 sWOm0 sWOoff "
         "sOldA sOldB sObase sWObase sFlG sFlS sRb sRj").split()
for i, n in enumerate(names): globals()[n] = f"s{38+i}"
sScale = "s4"
sT0, sT1, sT2, sT3 = "s3", "s6", "s7", "s5"
sM = "s[66:67]"; sM0 = "s66"
STB = 68; NST = 17
O = 0; S = 64; P = 96; QR = 112; S8 = 144; P8 = 152; NEGM = 156; NEGM8 = 172; L = 176; L8 = 177; T = 178
aK = 186; aK8 = 194; aV = 198; aV8 = 202; aWQ = 210; aX = 214; aX8 = 218
dK = 222; dV = 226; dWQ = 228; dX = 232
vLin = 237; vOst = 238; vQ8w = 239; vL8w = 240; vL8r = 241; vLane = 242; vZero = 243; dWO = 244; vInit = 253
NV = 256
aQ8 = 0; aO8 = 16; aPark = 48; aPacc = 96; aPool = 180; NPOOL = 12
NA = 232
XSLOT = [64*K, 44*K, 84*K]; XBASE = 44*K
WSLOT = [128*K, 144*K, 112*K]; WBASE = 112*K
Q8BUF = 104*K; L8BUF = 84*K; MRG = 96*K; O8SLOT = 144*K

nstamp = [2]; cur = [""]
def st(detail=False):
    if not STAMP or nstamp[0] >= NST - 2: return []
    if detail != (OPT["smode"] != ""): return []
    if detail and cur[0] != OPT["smode"]: return []
    k = nstamp[0]; nstamp[0] += 1
    return [f"s_mem{'real' if 'delay' in OPT else ''}time s[{STB+2*k}:{STB+2*k+1}]"]
lab = [0]
def newlab():
    lab[0] += 1; return lab[0]

def q_dma(slot, tag):
    g = []
    t = f";@tag={tag}"
    g.append([f"s_mul_i32 {sWQoff}, {sStage}, {64*8192}", f"s_add_u32 {sWQoff}, {sWQoff}, {sWQbase}"])
    g.append([f"s_lshl_b32 {sXoff}, {sStage}, 7", f"s_add_u32 {sXoff}, {sXoff}, {sXbase}"])
    g.append([f"s_add_u32 m0, {sW4096}, {WSLOT[slot]}", f"s_add_u32 {sStage}, {sStage}, 1",
              f"buffer_load_dwordx4 {vr(dWQ)}, {sWQ}, {sWQoff} offen {W_FLAGS} lds {t}"])
    for i in range(1, 4):
        g.append([f"buffer_load_dwordx4 {vr(dWQ+i)}, {sWQ}, {sWQoff} offen offset:{i*1024} {W_FLAGS} lds {t}"])
    g.append([f"s_add_u32 m0, {sXm0}, {XSLOT[slot]}", f"s_cmp_eq_u32 {sStage}, 9", f"s_cselect_b32 {sStage}, 0, {sStage}",
              f"buffer_load_dwordx4 {vr(dX)}, {sX}, {sXoff} offen {W_FLAGS} lds {t}"])
    g.append([f"buffer_load_dwordx4 {vr(dX+1)}, {sX}, {sXoff} offen offset:1024 {W_FLAGS} lds {t}"])
    for i in range(2, 4):
        g.append([f"buffer_load_dwordx4 {vr(dX+i)}, {sX}, {sXoff} offen offset:{i*1024} {W_FLAGS} lds {t}"])
    g.append([f"s_add_u32 m0, {sXm0}, {XSLOT[slot] + 4096}", "s_nop 0",
              f"buffer_load_dwordx4 {vr(dX+4)}, {sX}, {sXoff} offen {W_FLAGS} lds {t}"])
    return g

def u_dma(e):
    g = []
    t = f";@tag=u{e}"
    if e <= 7:
        g.append([f"s_add_u32 m0, {sW4096}, {(e % 4) * 16384}", f"s_add_u32 {sKoff}, {sKoff}, 16384",
                  f"buffer_load_dwordx4 {vr(dK)}, {sK}, {sKoff} offen {KV_FLAGS} lds {t}"])
        for i in range(1, 4):
            g.append([f"buffer_load_dwordx4 {vr(dK+i)}, {sK}, {sKoff} offen offset:{i*1024} {KV_FLAGS} lds {t}"])
    if e >= 1:
        g.append([f"s_add_u32 m0, {sW4096}, {65536 + ((e-1) % 4) * 16384}", f"s_add_u32 {sVoff}, {sVoff}, 16384",
                  f"buffer_load_dwordx4 {vr(dV)}, {sV}, {sVoff} offen {KV_FLAGS} lds {t}"])
        for i in range(1, 4):
            g.append([f"buffer_load_dwordx4 {vr(dV+(i&1))}, {sV}, {sVoff} offen offset:{i*1024} {KV_FLAGS} lds {t}"])
    return g
def kv_reset(extra=0):
    return [f"s_add_u32 {sKoff}, {sPair}, {(extra - 16384) & 0xffffffff}", f"s_mov_b32 {sVoff}, {sKoff}"]

def stage_off(stg, dst, size, base):
    c, sg, idx, r = stg
    return [[f"s_xor_b32 {sT1}, {r}, {idx}", f"s_mul_i32 {sT1}, {sT1}, {4*size}"],
            [f"s_add_u32 {sT1}, {sT1}, {(2*c+sg)*size}", f"s_add_u32 {dst}, {sT1}, {base}"]]
def wo_dma(stg, n):
    t = f";@tag=wo{n}"
    g = stage_off(stg, sWOoff, WHEAD, sWObase)
    for i in range(9):
        pre = [f"s_add_u32 m0, {sWOm0}, {(n%4)*36864 + (i//4)*4096}", "s_nop 0"] if i % 4 == 0 else []
        off = f"offset:{(i%4)*1024} " if i % 4 else ""
        g.append(pre + [f"buffer_load_dwordx4 {vr(dWO+i)}, {sWO}, {sWOoff} offen {off}{W_FLAGS} lds {t}"])
    return g
def o8_dma(stg, n):
    g = stage_off(stg, sM0, OHEAD, sObase)
    g.append([f"s_lshr_b32 {sT1}, {sW4096}, 2", f"s_add_u32 {sM0}, {sM0}, {sT1}"])
    g.append([f"s_add_u32 m0, {sT1}, {O8SLOT + (n%4)*4096}", f"s_add_u32 {sM0}, {sM0}, 32768",
              f"buffer_load_dwordx4 {vr(vLin)}, {sWS}, {sM0} offen {OLD} lds ;@tag=wo{n}"])
    return g
def oloads(stages, k):
    n, ks = k >> 2, k & 3
    g = []
    if ks == 0:
        g += stage_off(stages[n], sOldA, OHEAD, sObase)
        g.append([f"s_lshl_b32 {sT1}, {sW4096}, 1", f"s_add_u32 {sOldA}, {sOldA}, {sT1}", f"s_add_u32 {sOldB}, {sOldA}, 4096"])
    for r, so in enumerate((sOldA, sOldB)):
        g.append([f"buffer_load_dwordx4 {ar(aPark+8*(k%4)+4*r,4)}, {vr(vLin)}, {sWS}, {so} offen offset:{ks*1024} {OLD} ;@tag=o{k}"])
    return g
LAO = 3
def p_pre3(stages):
    g = o8_dma(stages[0], 0)
    for k in range(LAO): g += oloads(stages, k)
    return g

def spread(groups, gaps, misc):
    n = len(groups)
    for k, grp in enumerate(groups):
        misc.setdefault(gaps[(k * len(gaps)) // n], []).extend(grp)

def signal(val, line=None, own=None):
    n = newlab()
    line = line or sFlG; own = own or sJ
    return [f"s_cmp_lg_u32 {sW}, 0", f"s_cbranch_scc1 SIG{n}", "s_mov_b64 exec, 1", f"v_mov_b32 {vr(T+7)}, {val}",
            f"s_lshl_b32 {sM0}, {own}, 2", f"s_add_u32 {sM0}, {sM0}, {line}",
            f"buffer_store_dword {vr(T+7)}, {vr(vZero)}, {sWS}, {sM0} offen sc1 ;@nocount", "s_mov_b64 exec, -1", f"SIG{n}:"]
def flag_load(line):
    n = newlab()
    return n, [f"s_cmp_lg_u32 {sW}, 0", f"s_cbranch_scc1 FL{n}",
               f"buffer_load_dwordx4 {vr(T+2,4)}, {vr(vZero)}, {sWS}, {line} offen sc1", f"FL{n}:"]
def flag_check(n, line, cls, val):
    m = newlab()
    if cls is None: mn = [f"v_min_u32 {vr(T+6)}, {vr(T+2)}, {vr(T+3)}", f"v_min3_u32 {vr(T+6)}, {vr(T+6)}, {vr(T+4)}, {vr(T+5)}"]
    else: mn = [f"v_min_u32 {vr(T+6)}, {vr(T+2+cls)}, {vr(T+4+cls)}"]
    ld = [f"buffer_load_dwordx4 {vr(T+2,4)}, {vr(vZero)}, {sWS}, {line} offen sc1 ;@nocount", "s_waitcnt vmcnt(0) ;@nocount"]
    o = [f"s_cmp_lg_u32 {sW}, 0", f"s_cbranch_scc1 CE{m}", f"s_mov_b32 {sT3}, 0x20000"]
    o += [f"@waitmark m{n}"] if n is not None else ld
    o += [f"CL{m}:"] + mn + ["s_nop 0", f"v_readfirstlane_b32 {sM0}, {vr(T+6)}", "s_nop 0", f"s_cmp_ge_u32 {sM0}, {val}",
          f"s_cbranch_scc1 CE{m}", f"s_sleep {OPT['sleep']}"] + ld + [f"s_sub_u32 {sT3}, {sT3}, 1", f"s_cbranch_scc0 CL{m}", f"CE{m}:"]
    return o

def q_phase(p, park, nxt, sig, wqstep, firstq, stages=None, chk=None, fillers=()):
    QF = [aPool, aPool + 24]
    dq8 = aPark + 32 if park else aQ8
    def reads(i, s):
        f = QF[(4*i + s) & 1]
        xo = XSLOT[i % 3] - XBASE
        wo = WSLOT[i % 3] - WBASE + s * 4096
        r = [f"ds_read_b128 {ar(f,4)}, {vr(aX+s)} offset:{xo}"]
        def w(dl): return [f"ds_read_b64_tr_b16 {ar(f+8+4*dl+2*u,2)}, {vr(aWQ+dl)} offset:{wo+u*1024}" for u in range(2)]
        return r + w(0) + [f"ds_read_b128 {ar(f+4,4)}, {vr(aX8+s)} offset:{xo}"] + w(1) + w(2) + w(3)
    p("@waitvm q0")
    if firstq:
        n = newlab()
        p(f"""s_lshl_b32 {sT0}, {sG}, 2
        s_add_u32 {sT0}, {sT0}, {sJ}
        s_lshl_b32 {sT0}, {sT0}, 2
        s_add_u32 {sT0}, {sT0}, {sW}
        s_cmp_lg_u32 {sT0}, 3
        s_cbranch_scc1 NOPUB{n}
        s_mov_b64 exec, 1
        v_mov_b32 {vr(T+7)}, 1
        global_store_dword {vr(vInit)}, {vr(T+7)}, {sDBG} sc1 ;@nocount
        s_mov_b64 exec, -1
        NOPUB{n}:""")
    p("s_barrier")
    p.ext(st(True))
    p.ext(reads(0, 0))
    mf = []; ds = {}; misc = {}
    fl = None
    for i in range(9):
        base = len(mf)
        if nxt == 'P' and i == 7:
            fl, code = flag_load(sFlG); misc.setdefault(base - 1, []).extend(code)
        for s in range(4):
            f = QF[(4*i + s) & 1]
            first = (i == 0 and s == 0)
            def mm(acc, a, b):
                mf.append(f"v_mfma_f32_32x32x16_bf16 {vr(acc,16)}, {ar(a,4)}, {ar(b,4)}, {'0' if first else vr(acc,16)}")
            g0 = len(mf)
            mm(O, f+8, f); mm(S, f+8, f+4); mm(O+16, f+12, f); mm(O+32, f+16, f); mm(O+48, f+20, f)
            stt = g0
            if s < 3: r = reads(i, s+1)
            elif i < 8:
                r = reads(i+1, 0); stt = g0 + 1
                tags = f"q{i+1}" + (",ost" if (sig and i == 0) else "")
                pre = flag_check(fl, sFlG, *chk) if (nxt == 'P' and i == 7) else []
                ds.setdefault(stt, []).extend(pre + [f"@waitvm {tags} lgkmcnt(0)", "s_barrier"] + st(True))
                if sig and i == 0: misc.setdefault(stt + 3, []).extend(signal(sig))
            else: r = []
            for k, (a, b) in enumerate(((0,3),(3,6),(6,8),(8,10))):
                ds.setdefault(stt + k, []).extend(r[a:b])
        gaps = list(range(base, base + 15))
        if i <= 6: g = q_dma((i + 2) % 3, f"q{i+2}")
        elif nxt == 'Q': g = q_dma(i - 7, f"q{i-7}")
        elif nxt == 'A': g = u_dma(i - 7)
        else:
            g = wo_dma(stages[0], 0) if i == 7 else p_pre3(stages) + wo_dma(stages[1], 1)
            if i == 8: gaps = list(range(base, base + 20))
        if i == 7: g = [[f"s_add_u32 {sWQbase}, {sWQbase}, {wqstep & 0xffffffff}"]] + g
        spread(g, gaps, misc)
    p.ext(weave(mf, ds, misc, [(t, 0, 138) for t in fillers]))
    p("s_nop 7")
    p.ext(st(True))
    for j in range(0, 16, 2):
        p(f"v_pk_mul_f32 {vr(S+j,2)}, {vr(S+j,2)}, s[4:5] op_sel_hi:[1,0]")
    for j in range(8):
        p(f"v_cvt_pk_bf16_f32 {vr(S+16+j)}, {vr(S+2*j)}, {vr(S+2*j+1)}")
    p("s_mov_b32 exec_lo, 0xffff")
    p("s_mov_b32 exec_hi, 0xffff")
    p(f"ds_write_b128 {vr(vQ8w)}, {vr(S+16,4)}")
    p(f"ds_write_b128 {vr(vQ8w)}, {vr(S+20,4)} offset:512")
    p("s_mov_b64 exec, -1")
    for j in range(0, 64, 2):
        p(f"v_pk_mul_f32 {vr(O+j,2)}, {vr(O+j,2)}, s[4:5] op_sel_hi:[1,0]")
    for j in range(32):
        p(f"v_cvt_pk_bf16_f32 {vr(QR+j)}, {vr(O+2*j)}, {vr(O+2*j+1)}")
    if park:
        for j in range(32): p(f"v_accvgpr_write_b32 {ar(aPark+j)}, {vr(QR+j)}")
    if firstq:
        n = newlab()
        p(f"""s_cmp_lg_u32 {sW}, 0
        s_cbranch_scc1 NORD{n}
        global_load_dword {vr(vInit+1)}, {vr(vInit)}, {sDBG} sc1 ;@nocount
        NORD{n}:""")
    p(f"v_add_u32 {vr(T)}, {Q8BUF}, {vr(vLin)}")
    p("@waitvm u0 lgkmcnt(0)" if nxt == 'A' else "s_waitcnt lgkmcnt(0)")
    p("s_barrier")
    for s in range(4):
        p(f"ds_read_b128 {ar(dq8+4*s,4)}, {vr(T)} offset:{s*1024}")

slow_code = []
def a_phase(p, inst, prev, nxt, sig, stages=None, chk=None, extra=None):
    LA = int(OPT.get('la', 9)); GRP = int(OPT.get('grp', 3))
    mf = []; frag = []; stepstart = {}; qk8end = {}
    ds = {}; misc = {}
    def add(text_fn, reads_fn):
        f = aPool + 4 * (len(mf) % NPOOL)
        mf.append(text_fn(f)); frag.append(reads_fn(f))
    def qk(t, sl):
        sb = S + 16 * (t & 1)
        c = vr(NEGM, 16) if sl == 0 else vr(sb, 16)
        off = ((t >> 1) % 4) * 16384 + (t & 1) * 8192
        add(lambda f: f"v_mfma_f32_32x32x16_bf16 {vr(sb,16)}, {ar(f,4)}, {vr(QR+4*sl,4)}, {c}",
            lambda f: [f"ds_read_b128 {ar(f,4)}, {vr(aK+sl)} offset:{off}"])
    def pv(t, k):
        tp, D = k >> 2, k & 3
        c = "0" if (t == 0 and tp == 0) else vr(O + 16*D, 16)
        off = ((t >> 1) % 4) * 16384 + (t & 1) * 8192 + tp * 4096
        add(lambda f: f"v_mfma_f32_32x32x16_bf16 {vr(O+16*D,16)}, {ar(f,4)}, {vr(P+8*(t&1)+4*tp,4)}, {c}",
            lambda f: [f"ds_read_b64_tr_b16 {ar(f+2*u,2)}, {vr(aV+D)} offset:{off+u*2048}" for u in range(2)])
    def qk8(m, k):
        kt, sp = k >> 2, k & 3
        c = vr(NEGM8, 4) if sp == 0 else vr(S8 + 4*kt, 4)
        off = (m & 1) * 32768 + kt * 4096
        add(lambda f: f"v_mfma_f32_16x16x32_bf16 {vr(S8+4*kt,4)}, {ar(f,4)}, {ar(aQ8+4*sp,4)}, {c}",
            lambda f: [f"ds_read_b128 {ar(f,4)}, {vr(aK8+sp)} offset:{off}"])
    def pv8(m, D):
        c = "0" if m == 0 else ar(aO8 + 4*D, 4)
        off = (m & 1) * 32768
        add(lambda f: f"v_mfma_f32_16x16x32_bf16 {ar(aO8+4*D,4)}, {ar(f,4)}, {vr(P8,4)}, {c}",
            lambda f: [f"ds_read_b64_tr_b16 {ar(f+2*u,2)}, {vr(aV8+D)} offset:{off+u*4096}" for u in range(2)])
    for u in range(-1, 17):
        stepstart[u] = len(mf)
        seq = []
        for k in range(9):
            if 0 <= u + 1 <= 15 and k < 8: seq.append((qk, u + 1, k))
            if 0 <= u - 1 <= 15 and k >= 1: seq.append((pv, u - 1, k - 1))
        ex = []
        if u >= 1 and u % 4 == 1 and u <= 13: ex = [(qk8, u // 4, k) for k in range(8)]
        if u >= 4 and u % 4 == 0: ex = [(pv8, u // 4 - 1, k) for k in range(8)]
        merged = []
        for k, it in enumerate(seq):
            merged.append(it)
            if ex and k >= (0 if u == 16 else 1): merged.append(ex.pop(0))
        merged += ex
        for fn, a, b in merged:
            if fn is qk8: qk8end[a] = len(mf)
            fn(a, b)
    stepstart[17] = len(mf)
    n = len(mf)
    bar = {}
    fl = None
    for e in range(1, 9):
        g = stepstart[2*e - 1] - LA
        bar[e] = g
        tags = f"u{e}" + (",ost" if (sig and e == 1) else "")
        pre = []
        if nxt == 'P' and e == 7:
            fl, code = flag_load(sFlG); misc.setdefault(g + 1, []).extend(code)
        if nxt == 'P' and e == 8: pre = flag_check(fl, sFlG, *chk)
        ds.setdefault(g, []).extend(pre + [f"@waitvm {tags}" + (" lgkmcnt(4)" if e == 8 else ""), "s_barrier"] + st(True))
    bar[0] = -1; bar[9] = n - 2
    pre = []
    for i in range(n):
        if i - LA < 0: pre += frag[i]
        else: ds.setdefault(i - LA, []).extend(frag[i])
    ds.setdefault(n - 4, []).extend(["s_waitcnt lgkmcnt(0)", "s_barrier"])
    for e in range(0, 9):
        gaps = list(range(bar[e] + 1, bar[e+1]))
        if e <= 6: g = u_dma(e + 2)
        elif nxt == 'P': g = wo_dma(stages[0], 0) + p_pre3(stages) if e == 8 else []
        elif nxt == 'A': g = ([kv_reset(131072)] if e == 7 else []) + u_dma(e - 7)
        else: g = q_dma(e - 7, f"q{e-7}")
        if extra and e in extra: g = g + extra[e]
        if g: spread(g, gaps, misc)
    ops = []
    def smx(sb, pb, l, cnt, lo, hi):
        b = len(ops)
        for j in range(cnt): ops.append(dict(text=f"v_exp_f32 {vr(sb+j)}, {vr(sb+j)}", lo=lo, hi=hi, deps=[], pri=j))
        for j in range(cnt): ops.append(dict(text=f"v_add_f32 {vr(l)}, {vr(l)}, {vr(sb+j)}", lo=lo, hi=hi, deps=[b+j], pri=j+2.5))
        for j in range(0, cnt, 2):
            ops.append(dict(text=f"v_cvt_pk_bf16_f32 {vr(pb+j//2)}, {vr(sb+j)}, {vr(sb+j+1)}", lo=lo, hi=hi, deps=[b+j, b+j+1], pri=j+2.4))
    for u in range(0, 16):
        smx(S + 16*(u&1), P + 8*(u&1), L, 16, stepstart[u] + (3 if u == 0 else int(OPT.get('lo', 0))), stepstart[u+1] - 1)
        if u % 4 == 1: smx(S8, P8, L8, 8, qk8end[u//4] + 3, stepstart[u+3] - 1)
    for j in range(16): p(f"v_mov_b32 {vr(NEGM+j)}, 0")
    for j in range(4): p(f"v_mov_b32 {vr(NEGM8+j)}, 0")
    p(f"s_mov_b32 {sRetry}, 0")
    if prev != 'Q':
        p("@waitvm u0")
        p("s_barrier")
    if prev == 'P2':
        for g in u_dma(1)[4:]: p.ext(g)
    p(f"ATT{inst}:")
    p(f"s_mov_b32 {sStage}, {sStage0}")
    p(f"v_mov_b32 {vr(L)}, 0")
    p(f"v_mov_b32 {vr(L8)}, 0")
    W = fill_valu(auto_lgkm(pre + weave(mf, ds, misc, []), group=GRP), ops)
    W = [x.strip() for x in W]
    if sig:
        k = W.index("s_barrier")
        m = newlab()
        W = W[:k+1] + [f"s_cmp_lg_u32 {sRetry}, 0", f"s_cbranch_scc1 SKP{m}"] + signal(sig) + [f"SKP{m}:"] + W[k+1:]
    p.ext(W)
    if nxt == 'P':
        for g in wo_dma(stages[1], 1): p.ext(g)
    p.ext(st(True))
    t = T
    p(f"""v_mov_b32 {vr(t)}, {vr(L)}
    v_mov_b32 {vr(t+1)}, {vr(L8)}
    s_lshl_b32 {sT1}, {sW4096}, 1
    s_add_u32 {sT1}, {sT1}, {MRG}
    v_permlane32_swap_b32 {vr(L)}, {vr(t)}
    v_permlane16_swap_b32 {vr(L8)}, {vr(t+1)}
    v_add_f32 {vr(L)}, {vr(L)}, {vr(t)}
    v_add_f32 {vr(L8)}, {vr(L8)}, {vr(t+1)}
    v_rcp_f32 {vr(t+2)}, {vr(L)}
    v_mov_b32 {vr(t+1)}, {vr(L8)}
    s_mov_b32 {sT0}, 0x4e800000
    s_mov_b32 {sT2}, 0x30800000
    v_permlane32_swap_b32 {vr(L8)}, {vr(t+1)}
    v_add_f32 {vr(L8)}, {vr(L8)}, {vr(t+1)}
    v_cmp_nge_f32 vcc, {sT0}, {vr(L)}
    v_cmp_nle_f32 {sM}, {sT2}, {vr(L)}
    v_add_u32 {vr(t+3)}, {sT1}, {vr(vLin)}
    s_or_b64 {sM}, vcc, {sM}
    v_cmp_nge_f32 vcc, {sT0}, {vr(L8)}
    s_lshr_b32 {sT1}, {sW4096}, 1
    s_add_u32 {sT1}, {sT1}, {MRG}
    s_or_b64 vcc, vcc, {sM}
    s_cselect_b32 {sT0}, 1, 0
    v_add_u32 {vr(t+4)}, {sT1}, {vr(vLin)}
    v_mov_b32 {vr(t+1)}, {sT0}""")
    for D in range(8):
        p(f"ds_write_b128 {vr(t+3)}, {ar(aO8+4*D,4)} offset:{D*1024}")
    p(f"ds_write_b32 {vr(vL8w)}, {vr(L8)}")
    p(f"ds_write_b32 {vr(vL8w)}, {vr(t+1)} offset:256")
    p(f"s_lshl_b32 {sWQoff}, {sW4096}, 1")
    p(f"s_add_u32 {sWQoff}, {sWQoff}, {sOst}")
    def norm(D):
        o = O + 16 * D
        for j in range(0, 16, 2):
            p(f"v_pk_mul_f32 {vr(o+j,2)}, {vr(o+j,2)}, {vr(t+2,2)} op_sel_hi:[1,0]")
        for jj in range(2):
            d = S + 8 * D + 4 * jj
            for k, src in enumerate((4*jj, 4*jj+2, 8+4*jj, 8+4*jj+2)):
                p(f"v_cvt_pk_bf16_f32 {vr(d+k)}, {vr(o+src)}, {vr(o+src+1)}")
            p(f"buffer_store_dwordx4 {vr(d,4)}, {vr(vOst)}, {sWS}, {sWQoff} offen offset:{D*1024+jj*512} {OST} ;@tag=ost")
    norm(0); norm(1)
    if inst[1] == '0':
        m = newlab()
        p(f"""s_cmp_lg_u32 {sW}, 0
        s_cbranch_scc1 INITE{m}
        s_mov_b32 {sT1}, 0x20000
        INITL{m}:
        v_readfirstlane_b32 {sT0}, {vr(vInit+1)}
        s_nop 0
        s_cmp_lg_u32 {sT0}, 0
        s_cbranch_scc1 INITE{m}
        global_load_dword {vr(vInit+1)}, {vr(vInit)}, {sDBG} sc1 ;@nocount
        s_waitcnt vmcnt(0) ;@nocount
        s_sub_u32 {sT1}, {sT1}, 1
        s_cbranch_scc0 INITL{m}
        INITE{m}:""")
    p.ext(st(True))
    p("s_waitcnt lgkmcnt(0)")
    p("s_barrier")
    M = O
    for v in range(4):
        p(f"ds_read_b128 {vr(M+8*v,4)}, {vr(t+4)} offset:{v*8192}")
        p(f"ds_read_b128 {vr(M+8*v+4,4)}, {vr(t+4)} offset:{v*8192+1024}")
    p(f"ds_read_b128 {vr(P,4)}, {vr(vL8r)}")
    p(f"ds_read_b128 {vr(P+4,4)}, {vr(vL8r)} offset:256")
    norm(2); norm(3)
    p(f"""v_add_f32 {vr(P)}, {vr(P)}, {vr(P+1)}
    v_add_f32 {vr(P+2)}, {vr(P+2)}, {vr(P+3)}
    v_or_b32 {vr(P+4)}, {vr(P+4)}, {vr(P+5)}
    v_add_f32 {vr(P)}, {vr(P)}, {vr(P+2)}
    v_or3_b32 {vr(P+4)}, {vr(P+4)}, {vr(P+6)}, {vr(P+7)}
    v_cmp_nle_f32 vcc, {sT2}, {vr(P)}
    v_cmp_ne_u32 {sM}, 0, {vr(P+4)}
    v_rcp_f32 {vr(P+2)}, {vr(P)}
    s_lshr_b32 {sT1}, {sW4096}, 2
    s_add_u32 {sT1}, {sT1}, {sOst}
    s_or_b64 vcc, vcc, {sM}
    s_cselect_b32 {sT0}, 1, 0
    s_cmp_gt_u32 {sT0}, {sRetry}
    s_cbranch_scc1 SLOW{inst}""")
    for j in range(8):
        p(f"v_add_f32 {vr(M+j)}, {vr(M+j)}, {vr(M+8+j)}")
        p(f"v_add_f32 {vr(M+16+j)}, {vr(M+16+j)}, {vr(M+24+j)}")
    for j in range(8): p(f"v_add_f32 {vr(M+j)}, {vr(M+j)}, {vr(M+16+j)}")
    for j in range(8): p(f"v_mul_f32 {vr(M+j)}, {vr(M+j)}, {vr(P+2)}")
    for j in range(4): p(f"v_cvt_pk_bf16_f32 {vr(M+j)}, {vr(M+2*j)}, {vr(M+2*j+1)}")
    p(f"""s_add_u32 {sT1}, {sT1}, 32768
    buffer_store_dwordx4 {vr(M,4)}, {vr(vLin)}, {sWS}, {sT1} offen {OST} ;@tag=ost
    s_add_u32 {sPair}, {sPair}, 131072
    s_add_u32 {sOst}, {sOst}, {OHEAD}""")
    if nxt != 'A': p.ext(kv_reset())
    else:
        for j in range(32): p(f"v_accvgpr_read_b32 {vr(QR+j)}, {ar(aPark+j)}")
        for j in range(16): p(f"v_accvgpr_mov_b32 {ar(aQ8+j)}, {ar(aPark+32+j)}")
    q = Prog()
    F = O; ln = vr(vLane)
    t0, t1, t2, t3, t4 = [vr(T+i) for i in range(5)]
    q(f"""SLOW{inst}:
    s_waitcnt vmcnt(0) lgkmcnt(0)
    s_barrier
    s_mov_b32 {sRetry}, 1
    v_and_b32 {t0}, 31, {ln}
    v_lshrrev_b32 {t1}, 5, {ln}
    v_lshlrev_b32 {t1}, 4, {t1}
    v_lshl_add_u32 {t0}, {t0}, 8, {t1}
    v_and_b32 {t2}, 15, {ln}
    v_lshrrev_b32 {t1}, 4, {ln}
    v_lshlrev_b32 {t1}, 4, {t1}
    v_lshl_add_u32 {t2}, {t2}, 8, {t1}
    v_mov_b32 {t3}, 0xff800000
    v_mov_b32 {t4}, 0xff800000
    s_mov_b32 {sT0}, {sPair}
    s_mov_b32 {sT2}, 0
    SLOWL{inst}:""")
    for sl in range(8):
        q(f"""s_lshl_b32 {sT1}, {sW}, 1
        s_add_u32 {sT1}, {sT1}, {sl}
        s_and_b32 {sT1}, {sT1}, 7
        s_lshl_b32 {sT1}, {sT1}, 5
        s_add_u32 {sT1}, {sT1}, {sT0}
        buffer_load_dwordx4 {vr(F+4*sl,4)}, {t0}, {sK}, {sT1} offen""")
    q("s_waitcnt vmcnt(0)")
    for sl in range(8):
        q(f"v_mfma_f32_32x32x16_bf16 {vr(S,16)}, {vr(F+4*sl,4)}, {vr(QR+4*sl,4)}, {'0' if sl == 0 else vr(S,16)}")
    q("s_nop 4")
    q(f"s_add_u32 {sT1}, {sT0}, 4096")
    for kt in range(2):
        for sp in range(4):
            q(f"buffer_load_dwordx4 {vr(F+16*kt+4*sp,4)}, {t2}, {sK}, {sT0 if kt == 0 else sT1} offen offset:{sp*64}")
    q("s_waitcnt vmcnt(0)")
    for kt in range(2):
        for sp in range(4):
            q(f"v_mfma_f32_16x16x32_bf16 {vr(S8+4*kt,4)}, {vr(F+16*kt+4*sp,4)}, {ar(aQ8+4*sp,4)}, {'0' if sp == 0 else vr(S8+4*kt,4)}")
    q("s_nop 15")
    for j in range(0, 16, 2): q(f"v_max3_f32 {t3}, {t3}, {vr(S+j)}, {vr(S+j+1)}")
    for j in range(0, 8, 2): q(f"v_max3_f32 {t4}, {t4}, {vr(S8+j)}, {vr(S8+j+1)}")
    q(f"""s_add_u32 {sT0}, {sT0}, 8192
    s_add_u32 {sT2}, {sT2}, 1
    s_cmp_lt_u32 {sT2}, 16
    s_cbranch_scc1 SLOWL{inst}
    v_mov_b32 {t0}, {t3}
    v_mov_b32 {t1}, {t4}
    s_nop 1
    v_permlane32_swap_b32 {t3}, {t0}
    v_permlane16_swap_b32 {t4}, {t1}
    v_max_f32 {t3}, {t3}, {t0}
    v_max_f32 {t4}, {t4}, {t1}
    v_mov_b32 {t1}, {t4}
    s_nop 1
    v_permlane32_swap_b32 {t4}, {t1}
    v_max_f32 {t4}, {t4}, {t1}""")
    for j in range(16): q(f"v_sub_f32 {vr(NEGM+j)}, 0, {t3}")
    for j in range(4): q(f"v_sub_f32 {vr(NEGM8+j)}, 0, {t4}")
    q.ext(kv_reset())
    for g in u_dma(0) + u_dma(1): q.ext(g)
    q(f"""s_waitcnt vmcnt(0)
    s_barrier
    s_branch ATT{inst}""")
    slow_code.extend(q.L)

def p_seg(p, stages, first, nxt, sig, checks):
    aW = S; vO8 = S + 9; B8 = S + 12
    WP = O; NP = 6; LAF = 4
    NS = len(stages); NK = 4 * NS
    ln = vr(vLane); t0, t1 = vr(T), vr(T+1)
    p(f"""v_lshrrev_b32 {t0}, 2, {ln}
    v_mul_u32_u24 {t0}, 288, {t0}
    v_and_b32 {t1}, 3, {ln}
    v_lshl_add_u32 {t0}, {t1}, 3, {t0}
    s_lshl_b32 {sT1}, {sW}, 6
    v_add_u32 {t0}, {sT1}, {t0}
    v_add_u32 {vr(vO8)}, {O8SLOT}, {vr(vLin)}""")
    for i in range(9):
        if i < 3: p(f"v_add_u32 {vr(aW+i)}, {32*i}, {t0}")
        else:
            p(f"""s_cmp_ge_u32 {sW}, {(9 - i + 1) // 2}
            s_cselect_b32 {sT0}, {(-288) & 0xffffffff}, 0
            s_add_u32 {sT0}, {sT0}, {32*i}
            v_add_u32 {vr(aW+i)}, {sT0}, {t0}""")
    p.ext(st(True))
    p("@waitvm wo0 lgkmcnt(0)")
    p("s_barrier")
    p.ext(st(True))
    def freads(F):
        k, i = divmod(F, 9)
        f = WP + 4 * (F % NP)
        off = ((k % 16) % 7) * 9216
        r = [f"ds_read_b64_tr_b16 {vr(f+2*u,2)}, {vr(aW+i)} offset:{off+u*4608}" for u in range(2)]
        if i == 0: r.append(f"ds_read_b128 {vr(B8+4*(k&1),4)}, {vr(vO8)} offset:{(k%16)*1024}")
        return r
    for F in range(LAF): p.ext(freads(F))
    mf = []; ds = {}; misc = {}
    first_gap = {}; free = {}
    for k in range(NK):
        free[k] = []
        for i in range(9):
            F = 9 * k + i
            f = WP + 4 * (F % NP)
            first_gap[F] = len(mf)
            for r in ([0, 1, 2] if i < 3 else [0, 1]):
                acc = aPacc + (4 * (2*i + r) if r < 2 else 72 + 4*i)
                c = "0" if (first and k == 0) else ar(acc, 4)
                b = ar(aPark+8*(k%4)+4*r, 4) if r < 2 else vr(B8+4*(k&1), 4)
                mf.append(f"v_mfma_f32_16x16x32_bf16 {ar(acc,4)}, {vr(f,4)}, {b}, {c}")
                if r >= 1: free[k].append(len(mf) - 1)
                if r == 1 and i < 3: free[k].append(len(mf) - 1)
    marks = {}
    for n in checks:
        marks[n], code = flag_load(sFlG)
        misc.setdefault(free[4*n - 3][0], []).extend(code)
    for F in range(LAF, 9 * NK):
        g = first_gap[F - LAF]
        k, i = divmod(F, 9)
        if i == 0 and k % 4 == 0:
            n = k // 4
            pre = flag_check(marks[n], sFlG, *checks[n]) if n in checks else []
            tags = f"wo{n}" + (",ost" if (sig and n == 1) else "")
            ds.setdefault(g, []).extend(pre + [f"@waitvm {tags}" + (" lgkmcnt(0)" if (NS == 2 and nxt == 'A') else ""), "s_barrier"] + st(True))
            if sig and n == 1: misc.setdefault(g + 1, []).extend(signal(sig))
        ds.setdefault(g, []).extend(freads(F))
        if k % 16 in (6, 13): misc.setdefault(g + 1, []).append(f"v_add_u32 {vr(aW+i)}, {7*9216}, {vr(aW+i)}")
        if k % 16 == 15 and k + 1 < NK: misc.setdefault(g + 1, []).append(f"v_subrev_u32 {vr(aW+i)}, {14*9216}, {vr(aW+i)}")
    pf = {}
    for n in range(NS):
        g = o8_dma(stages[n+1], n + 1) if n + 1 < NS else []
        if n + 2 < NS: g2 = wo_dma(stages[n+2], n + 2)
        elif nxt == 'A' and NS == 2: g2 = u_dma(0) + u_dma(1)[:4] if n == 1 else []
        elif nxt == 'A': g2 = u_dma(n + 2 - NS)
        else: g2 = []
        pf[4*n] = g + g2[:3]
        g2 = g2[3:]
        for k in range(1, 4): pf[4*n + k] = g2[((k-1)*len(g2))//3:(k*len(g2))//3]
    for k in range(NK):
        g = (oloads(stages, k + LAO) if k + LAO < NK else []) + pf[k]
        if g: spread(g, free[k][1:-1], misc)
        if k + 1 < NK: misc.setdefault(free[k][-1], []).append(f"@waitvm o{k+1}")
    p("@waitvm o0")
    p.ext(st(True))
    p.ext(weave(mf, ds, misc, []))

def f_phase(G):
    p = Prog()
    ln = vr(vLane); t0, t1 = vr(T), vr(T+1)
    units = {g: [3*g + k for k in range(3) if 3*g + k <= 10] for g in range(4)}
    p(f"""FIN{G}:
    s_lshl_b32 {sT1}, {sBlk}, 3
    s_add_u32 {sT1}, {sT1}, {sB}
    s_lshl_b32 {sT1}, {sT1}, 2
    s_add_u32 {sT1}, {sT1}, {sJ}
    s_lshl_b32 {sT1}, {sT1}, 6
    s_add_u32 {sT1}, {sT1}, {sW}
    s_mul_i32 {sOldA}, {sT1}, 3072
    s_add_u32 {sOldA}, {sOldA}, {PART}""")
    tb = 0
    for d in range(1, 4):
        Gd = (G + d) % 4
        p(f"s_add_u32 {sT0}, {sOldA}, {(Gd*16 + G*4) * 3072}")
        for k, u in enumerate(units[Gd]):
            b = O + 12 * (tb % 4); tb += 1
            nreg = 8 if u < 10 else 4
            for j in range(nreg): p(f"v_accvgpr_read_b32 {vr(b+j)}, {ar(aPacc+8*u+j)}")
            for j in range(nreg // 2): p(f"v_cvt_pk_bf16_f32 {vr(b+8+j)}, {vr(b+2*j)}, {vr(b+2*j+1)}")
            p(f"buffer_store_dwordx4 {vr(b+8,4)}, {vr(vLin)}, {sWS}, {sT0} offen offset:{k*1024} sc1")
    AC = P; LD = O; vOut = S
    for k, u in enumerate(units[G]):
        for j in range(8 if u < 10 else 4): p(f"v_accvgpr_read_b32 {vr(AC+8*k+j)}, {ar(aPacc+8*u+j)}")
    p(f"""v_and_b32 {t0}, 15, {ln}
    v_mul_u32_u24 {t0}, 2304, {t0}
    v_lshrrev_b32 {t1}, 4, {ln}
    v_lshl_add_u32 {vr(vOut)}, {t1}, 3, {t0}
    s_mul_i32 {sT2}, {sB}, {144*2304}
    s_mul_i32 {sT1}, {sJ}, 288
    s_add_u32 {sT2}, {sT2}, {sT1}
    s_mul_i32 {sT1}, {sBlk}, 1152
    s_add_u32 {sT2}, {sT2}, {sT1}
    s_lshl_b32 {sT1}, {sW}, 6
    s_add_u32 {sT2}, {sT2}, {sT1}""")
    so = [sKoff, sVoff, sWQoff, sXoff, sStage, sXbase]
    tiles = []
    for k, u in enumerate(units[G]):
        for r in range(2 if u < 10 else 1):
            tiles.append((AC + 8*k + 4*r, so[len(tiles)], u if u < 9 else (u - 9) * 2 + r, r if u < 9 else None))
    if G < 3: p(f"s_mul_i32 {sT1}, {sW}, {32*2304}\ns_add_u32 {sT2}, {sT2}, {sT1}")
    for reg, s_, i, r in tiles:
        row = (16 * r if r is not None else 128) * 2304
        if i >= 3:
            p(f"""s_cmp_ge_u32 {sW}, {(9 - i + 1) // 2}
            s_cselect_b32 {sT0}, {(-288) & 0xffffffff}, 0
            s_add_u32 {sT0}, {sT0}, {32*i + row}
            s_add_u32 {s_}, {sT2}, {sT0}""")
        else: p(f"s_add_u32 {s_}, {sT2}, {32*i + row}")
        if r is None and i == 2:
            p(f"s_cmp_eq_u32 {sW}, 3\ns_cselect_b32 {s_}, {s_}, 0x40000000")
    p(f"s_add_u32 {sOldA}, {sOldA}, {G*16*3072}")
    p.ext(st(True))
    p("s_waitcnt vmcnt(0)")
    p.ext(st(True))
    m = newlab()
    p(f"""s_lshl_b32 {sT0}, {sW}, 4
    s_add_u32 {sFlS}, {sFlS}, {sT0}
    s_add_u32 {sM0}, {sFlS}, {4*G}
    s_mov_b64 exec, 1
    v_mov_b32 {vr(T+7)}, 1
    buffer_store_dword {vr(T+7)}, {vr(vZero)}, {sWS}, {sM0} offen sc1 ;@nocount
    s_mov_b64 exec, -1
    s_mov_b32 {sT3}, 0x20000
    CL{m}:
    buffer_load_dwordx4 {vr(T+2,4)}, {vr(vZero)}, {sWS}, {sFlS} offen sc1 ;@nocount
    s_waitcnt vmcnt(0) ;@nocount
    v_min_u32 {vr(T+6)}, {vr(T+2)}, {vr(T+3)}
    v_min3_u32 {vr(T+6)}, {vr(T+6)}, {vr(T+4)}, {vr(T+5)}
    s_nop 0
    v_readfirstlane_b32 {sM0}, {vr(T+6)}
    s_nop 0
    s_cmp_ge_u32 {sM0}, 1
    s_cbranch_scc1 CE{m}
    s_sleep {OPT['fsleep']}
    s_sub_u32 {sT3}, {sT3}, 1
    s_cbranch_scc0 CL{m}
    CE{m}:""")
    p.ext(st(True))
    srcs = [(G + d) % 4 for d in range(1, 4)]
    for k, u in enumerate(units[G]):
        for d, Gs in enumerate(srcs):
            p(f"s_add_u32 {sT0}, {sOldA}, {Gs*4*3072}")
            p(f"buffer_load_dwordx4 {vr(LD+12*k+4*d,4)}, {vr(vLin)}, {sWS}, {sT0} offen offset:{k*1024} sc1")
    p(f"s_mov_b32 {sT0}, 0xffff0000")
    ti = 0
    for k, u in enumerate(units[G]):
        for d in range(3):
            for j in range(4 if u < 10 else 2):
                x = LD + 12*k + 4*d + j
                p(f"v_lshlrev_b32 {t0}, 16, {vr(x)}")
                p(f"v_and_b32 {t1}, {sT0}, {vr(x)}")
                p(f"v_add_f32 {vr(AC+8*k+2*j)}, {vr(AC+8*k+2*j)}, {t0}")
                p(f"v_add_f32 {vr(AC+8*k+2*j+1)}, {vr(AC+8*k+2*j+1)}, {t1}")
        for r in range(2 if u < 10 else 1):
            reg, s_, _, _ = tiles[ti]; ti += 1
            p(f"v_cvt_pk_bf16_f32 {vr(reg)}, {vr(reg)}, {vr(reg+1)}")
            p(f"v_cvt_pk_bf16_f32 {vr(reg+1)}, {vr(reg+2)}, {vr(reg+3)}")
            p(f"buffer_store_dwordx2 {vr(reg,2)}, {vr(vOut)}, {sOUT}, {s_} offen {OPT.get('outfl', '')}")
    if STAMP:
        e = STB + 2 * (NST - 2)
        p(f"""s_waitcnt vmcnt(0)
        s_memtime s[{e}:{e+1}]
        s_memrealtime s[{e+2}:{e+3}]
        s_waitcnt lgkmcnt(0)
        s_lshl_b32 s3, s2, 2
        s_add_u32 s3, s3, {sW}
        s_lshl_b32 s3, s3, 7
        s_add_u32 s3, s3, {WSSIZE}
        s_mov_b32 s26, {WSSIZE + 262144}
        s_mov_b64 exec, 1""")
        if "gdelay" in OPT:
            n = newlab()
            p(f"""s_cmp_lg_u32 {sW}, 0
            s_cbranch_scc1 NOD{n}
            s_not_b32 s5, s96
            v_mov_b32 v0, s5
            v_mov_b32 v1, s96
            v_mov_b32 v2, s{e+2}
            v_mov_b32 v3, 1
            global_atomic_umax {vr(vZero)}, v0, {sDBG} offset:160 sc1
            global_atomic_umax {vr(vZero)}, v1, {sDBG} offset:164 sc1
            global_atomic_umax {vr(vZero)}, v2, {sDBG} offset:168 sc1
            s_waitcnt vmcnt(0)
            global_atomic_add {vr(vZero)}, v3, {sDBG} offset:172 sc1
            s_cmp_lg_u32 s2, 0
            s_cbranch_scc1 NOD{n}
            s_mov_b32 s7, 0x40000
            GL{n}:
            global_load_dwordx4 v[4:7], {vr(vZero)}, {sDBG} offset:160 sc1
            s_waitcnt vmcnt(0)
            v_readfirstlane_b32 s5, v7
            s_nop 1
            s_cmp_ge_u32 s5, 256
            s_cbranch_scc1 GE{n}
            s_sleep 8
            s_sub_u32 s7, s7, 1
            s_cbranch_scc0 GL{n}
            GE{n}:
            v_readfirstlane_b32 s5, v4
            v_readfirstlane_b32 s6, v{5 if OPT["gdelay"][0] == "s" else 6}
            s_nop 1
            s_not_b32 s5, s5
            s_sub_u32 s5, s6, s5
            s_mul_i32 s5, s5, {OPT["gdelay"][1:]}
            s_memrealtime s[6:7]
            s_waitcnt lgkmcnt(0)
            s_add_u32 s5, s5, s6
            DL{n}:
            s_memrealtime s[6:7]
            s_waitcnt lgkmcnt(0)
            s_sub_u32 s6, s6, s5
            s_cmp_lt_i32 s6, 0
            s_cbranch_scc1 DL{n}
            NOD{n}:
            s_endpgm""")
        if "delay" in OPT:
            a, b, wg = [int(x) for x in OPT["delay"].split(":")]
            n = newlab()
            p(f"""s_cmp_lg_u32 s2, {wg}
            s_cbranch_scc1 NOD{n}
            s_sub_u32 s5, s{STB+2*b}, s{STB+2*a}
            s_lshl_b32 s5, s5, 3
            s_add_u32 s5, s5, s{e+2}
            DL{n}:
            s_memrealtime s[6:7]
            s_waitcnt lgkmcnt(0)
            s_sub_u32 s6, s6, s5
            s_cmp_lt_i32 s6, 0
            s_cbranch_scc1 DL{n}
            NOD{n}:
            s_endpgm""")
        if "dbgst" in sys.argv:
            n = newlab()
            p(f"""v_mov_b32 v0, s{e+2}
            s_not_b32 s5, s{STB+2}
            v_mov_b32 v1, s5
            global_atomic_umax {vr(vZero)}, v0, {sDBG} sc1
            global_atomic_umax {vr(vZero)}, v1, {sDBG} offset:4 sc1
            s_lshl_b32 s5, s2, 2
            s_add_u32 s5, s5, {sW}
            s_and_b32 s6, s5, {0xffffffff - 256}
            s_cmp_lg_u32 s6, 0
            s_cbranch_scc1 NOD{n}
            s_lshr_b32 s5, s5, 8
            s_mul_i32 s5, s5, 28
            s_add_u32 s5, s5, 8
            v_mov_b32 v9, s5""")
            for k in range(7):
                src = STB + 2*(2+k) if k < 6 else e
                p(f"s_sub_u32 s6, s{src}, s{STB}\nv_mov_b32 v0, s6\nglobal_store_dword v9, v0, {sDBG} offset:{4*k}")
            p(f"NOD{n}:")
        for k in range(NST): p(f"v_mov_b32 v{k}, s{STB+2*k}")
        for k in range(0, 20, 4): p(f"buffer_store_dwordx4 v[{k}:{k+3}], {vr(vZero)}, {sWS}, s3 offen offset:{4*k}")
    p("s_endpgm")
    L_ = merge_waits(auto_lgkm(auto_vm(p.L)))
    return L_, len(check_hazards(L_))

def prologue(p):
    p(f"""s_cmp_ge_u32 s2, 256
    s_cbranch_scc1 K_END
    {"s_memrealtime s[96:97]" if STAMP else ""}
    s_load_dwordx8 s[68:75], s[0:1], 0
    s_load_dwordx8 s[76:83], s[0:1], 40
    s_load_dwordx2 s[84:85], s[0:1], 32
    s_load_dwordx2 s[86:87], s[0:1], 72
    s_load_dwordx2 s[32:33], s[0:1], 80
    s_load_dwordx2 s[36:37], s[0:1], 88
    s_load_dwordx2 s[24:25], s[0:1], 96
    v_and_b32 {vr(vLane)}, 63, v0
    v_lshrrev_b32 v1, 6, v0
    s_and_b32 s3, s2, 7
    v_readfirstlane_b32 {sW}, v1
    s_lshr_b32 s4, s2, 3
    s_lshr_b32 {sBlk}, s3, 2
    s_and_b32 {sG}, s3, 3
    s_and_b32 {sB}, s4, 7
    s_lshr_b32 {sJ}, s4, 3
    s_lshl_b32 s5, {sJ}, 1
    s_lshl_b32 s3, {sG}, 3
    s_add_u32 s3, s3, s5
    s_add_u32 {sStage0}, s5, {sB}
    s_cmp_ge_u32 {sStage0}, 9
    s_cselect_b32 s5, 9, 0
    s_sub_u32 {sStage0}, {sStage0}, s5
    s_mov_b32 {sStage}, {sStage0}
    s_lshl_b32 {sW4096}, {sW}, 12
    s_mul_i32 {sXm0}, {sW}, 5120
    s_mul_i32 {sXbase}, {sB}, 165888
    s_and_b32 s5, {sJ}, 1
    s_add_u32 s5, s5, s3
    s_lshl_b32 {sWQbase}, s5, 8
    s_lshl_b32 s5, {sB}, 5
    s_add_u32 s5, s5, s3
    s_lshl_b32 {sPair}, s5, 17
    s_lshl_b32 s6, {sBlk}, 8
    s_add_u32 s5, s5, s6
    s_mul_i32 {sOst}, s5, {OHEAD}
    s_mov_b32 s10, 1327104
    s_mov_b32 s11, 0x20000
    s_mov_b32 s14, 33554432
    s_mov_b32 s15, 0x20000
    s_mov_b32 s18, 33554432
    s_mov_b32 s19, 0x20000
    s_mov_b32 s22, 4718592
    s_mov_b32 s23, 0x20000
    s_mov_b32 s26, {WSSIZE}
    s_mov_b32 s27, 0x20000
    s_mov_b32 s30, 4718592
    s_mov_b32 s31, 0x20000
    s_mov_b32 s34, 2654208
    s_mov_b32 s35, 0x20000""")
    ln = vr(vLane)
    t0, t1, t2, t3, t4, t5 = [vr(T+i) for i in range(6)]
    l16, l4, r32, hh, cc, rr = [vr(S8+i) for i in range(6)]
    g1, l7, l3 = [vr(S8+6+i) for i in range(3)]
    p(f"""v_and_b32 {l16}, 15, {ln}
    v_lshrrev_b32 {l4}, 4, {ln}
    v_and_b32 {l7}, 7, {ln}
    v_lshrrev_b32 {l3}, 3, {ln}
    v_lshlrev_b32 {t0}, 2, {l4}
    v_xor_b32 {t0}, {t0}, {l16}
    v_lshlrev_b32 {t0}, 4, {t0}
    s_lshl_b32 s3, {sW}, 4
    v_add_u32 {t1}, s3, {l4}
    v_lshl_add_u32 {vr(dWQ)}, {t1}, 13, {t0}""")
    for i in range(1, 4): p(f"v_add_u32 {vr(dWQ+i)}, {i*(32768-1024)}, {vr(dWQ)}")
    p(f"s_mul_i32 s3, {sW}, 5")
    p(f"v_mul_u32_u24 {t1}, 1152, {l3}")
    for i in range(5):
        p(f"""s_add_u32 s4, s3, {i}
        s_lshl_b32 s5, s4, 2
        s_mul_i32 s4, s4, 9216
        v_add_u32 {t0}, s5, {l4}
        v_and_b32 {t0}, 7, {t0}
        v_xor_b32 {t0}, {t0}, {l7}
        v_lshlrev_b32 {t0}, 4, {t0}
        s_sub_u32 s4, s4, {i*1024 if i < 4 else 0}
        v_add3_u32 {vr(dX+i)}, {t0}, {t1}, s4""")
    p(f"""s_lshl_b32 s6, {sBlk}, 3
    s_add_u32 s6, s6, {sB}
    s_lshl_b32 s3, s6, 10
    s_add_u32 s3, s3, {FLAGS}
    s_lshl_b32 s5, {sG}, 7
    s_add_u32 {sFlG}, s3, s5
    s_lshl_b32 s5, {sJ}, 7
    s_add_u32 {sFlS}, s3, s5
    s_add_u32 {sFlS}, {sFlS}, 512
    v_mov_b32 {vr(vZero)}, 0
    v_lshlrev_b32 {vr(vLin)}, 4, {ln}
    s_lshl_b32 s5, s6, 2
    s_add_u32 s5, s5, 64
    v_mov_b32 {vr(vInit)}, s5
    s_waitcnt lgkmcnt(0)
    s_cmp_eq_u32 {sBlk}, 0
    s_cselect_b64 s[8:9], s[68:69], s[76:77]
    s_cselect_b64 s[12:13], s[70:71], s[78:79]
    s_cselect_b64 s[16:17], s[72:73], s[80:81]
    s_cselect_b64 s[20:21], s[74:75], s[82:83]
    s_cselect_b64 s[28:29], s[84:85], s[86:87]""")
    if STAMP: p(f"s_memtime s[{STB}:{STB+1}]\ns_memrealtime s[{STB+2}:{STB+3}]")
    p(f"""s_lshl_b32 s5, {sG}, 2
    s_add_u32 s5, s5, {sJ}
    s_lshl_b32 s5, s5, 2
    s_add_u32 s5, s5, {sW}
    s_cmp_lg_u32 s5, 3
    s_cbranch_scc1 NOINIT
    v_mov_b32 v10, 0
    v_mov_b32 v11, 0
    v_mov_b32 v12, 0
    v_mov_b32 v13, 0
    buffer_store_dwordx4 v[10:13], {vr(vLin)}, {sWS}, s3 offen sc1 ;@nocount
    NOINIT:""")
    for g in q_dma(0, "q0"): p.ext(g)
    p(f"""v_and_b32 {r32}, 31, {ln}
    v_lshrrev_b32 {hh}, 5, {ln}
    v_and_b32 {cc}, 3, {ln}
    v_bfe_u32 {rr}, {ln}, 2, 2
    v_and_b32 {g1}, 1, {l4}
    v_and_b32 {t0}, 1, {cc}
    v_lshl_add_u32 {t0}, {g1}, 1, {t0}
    v_lshlrev_b32 {t0}, 4, {t0}
    v_lshrrev_b32 {t1}, 1, {cc}
    v_lshl_add_u32 {t2}, {t1}, 3, {t0}
    v_lshl_add_u32 {t0}, {hh}, 3, {rr}
    v_lshl_add_u32 {t3}, {t0}, 8, {t2}
    v_add_u32 {t3}, {WBASE}, {t3}""")
    for dl in range(4):
        p(f"""s_add_u32 s3, {sW}, {dl}
        s_and_b32 s3, s3, 3
        v_xor_b32 {t0}, s3, {rr}
        v_lshl_add_u32 {vr(aWQ+dl)}, {t0}, 6, {t3}""")
    p(f"""v_bfe_u32 {t1}, {r32}, 1, 3
    v_lshlrev_b32 {t3}, 7, {r32}
    v_add_u32 {t3}, {XBASE}, {t3}""")
    for s in range(4):
        p(f"""v_add_u32 {t0}, {2*s}, {hh}
        v_xor_b32 {t0}, {t0}, {t1}
        v_lshl_add_u32 {t0}, {t0}, 4, {t3}
        v_add_u32 {vr(aX+s)}, {sW4096}, {t0}
        v_add_u32 {vr(aX8+s)}, {128*128}, {t0}""")
    for g in q_dma(1, "q1"): p.ext(g)
    pp = p; p = Prog()
    for i in range(4):
        p(f"""v_add_u32 {t0}, {4*i}, {l4}
        v_xor_b32 {t0}, {t0}, {l16}
        v_lshlrev_b32 {t0}, 4, {t0}
        v_lshl_add_u32 {t0}, {l4}, 8, {t0}
        v_add_u32 {vr(dK+i)}, {sW4096}, {t0}""")
    p(f"""v_lshlrev_b32 {t0}, 2, {l4}
    v_xor_b32 {t0}, {t0}, {l16}
    v_lshlrev_b32 {t0}, 4, {t0}
    v_lshl_add_u32 {t0}, {l4}, 8, {t0}
    v_add_u32 {vr(dV)}, {sW4096}, {t0}
    v_xor_b32 {vr(dV+1)}, 32, {vr(dV)}
    v_xor_b32 {t0}, {g1}, {hh}
    v_lshlrev_b32 {t0}, 5, {t0}
    v_lshl_add_u32 {t2}, {cc}, 3, {t0}
    v_lshl_add_u32 {t0}, {hh}, 2, {rr}
    v_lshl_add_u32 {t3}, {t0}, 8, {t2}
    v_add_u32 {t3}, 65536, {t3}""")
    for D in range(4):
        p(f"""v_xor_b32 {t0}, {D}, {rr}
        v_lshl_add_u32 {vr(aV+D)}, {t0}, 6, {t3}""")
    p(f"v_lshlrev_b32 {t3}, 8, {r32}")
    for sl in range(8):
        p(f"""s_lshl_b32 s3, {sW}, 1
        s_add_u32 s3, s3, {sl}
        s_and_b32 s3, s3, 7
        s_lshl_b32 s3, s3, 1
        v_add_u32 {t0}, s3, {hh}
        v_xor_b32 {t0}, {t0}, {l16}
        v_lshl_add_u32 {vr(aK+sl)}, {t0}, 4, {t3}""")
    p(f"""s_lshl_b32 s3, {sW}, 13
    v_lshlrev_b32 {t3}, 8, {l16}
    v_add_u32 {t3}, s3, {t3}""")
    for sp in range(4):
        p(f"""v_add_u32 {t0}, {4*sp}, {l4}
        v_xor_b32 {t0}, {t0}, {l16}
        v_lshl_add_u32 {vr(aK8+sp)}, {t0}, 4, {t3}""")
    p(f"""v_lshl_add_u32 {t0}, {l4}, 2, {rr}
    v_and_b32 {t1}, 1, {cc}
    v_lshlrev_b32 {t1}, 3, {t1}
    v_lshl_add_u32 {t3}, {t0}, 8, {t1}
    s_add_u32 s3, s3, 65536
    v_add_u32 {t3}, s3, {t3}
    v_lshlrev_b32 {t0}, 2, {rr}
    v_lshl_add_u32 {t0}, {g1}, 1, {t0}
    v_lshrrev_b32 {t1}, 1, {cc}
    v_xor_b32 {t2}, {t0}, {t1}""")
    for D in range(8):
        p(f"""v_xor_b32 {t0}, {2*D}, {t2}
        v_lshl_add_u32 {vr(aV8+D)}, {t0}, 4, {t3}""")
    p(f"""v_lshl_add_u32 {t0}, {hh}, 4, {r32}
    s_lshl_b32 s3, {sW}, 10
    s_add_u32 s3, s3, {Q8BUF}
    v_lshl_add_u32 {vr(vQ8w)}, {t0}, 4, s3
    v_lshlrev_b32 {t0}, 4, {l16}
    v_lshl_add_u32 {t1}, {g1}, 12, {t0}
    v_lshl_add_u32 {vr(vOst)}, {hh}, 8, {t1}
    v_add_u32 {vr(vL8r)}, {L8BUF}, {t0}
    s_lshl_b32 s3, {sW}, 2
    v_add_u32 {vr(vL8w)}, s3, {vr(vL8r)}
    s_mul_i32 s3, {sW}, {32*1152}
    s_movk_i32 s7, 3641""")
    for i in range(9):
        p(f"""v_add_u32 {t0}, {64*i}, {ln}
        v_mul_u32_u24 {t1}, s7, {t0}
        v_lshrrev_b32 {t1}, 16, {t1}
        v_mul_u32_u24 {t2}, {1152-288}, {t1}
        v_lshl_add_u32 {t0}, {t0}, 4, {t2}
        s_sub_u32 s5, s3, {(i%4)*1024}
        v_add_u32 {vr(dWO+i)}, s5, {t0}""")
    p(f"""s_mul_i32 {sWOm0}, {sW}, 9216
    s_mul_i32 {sWObase}, {sG}, {8*WHEAD}
    s_mul_i32 s3, {sJ}, 288
    s_add_u32 {sWObase}, {sWObase}, s3
    s_and_b32 {sRb}, {sB}, 1
    s_lshr_b32 {sRj}, {sJ}, 1
    s_lshl_b32 s3, {sBlk}, 3
    s_add_u32 s3, s3, {sB}
    s_lshl_b32 s3, s3, 2
    s_add_u32 s3, s3, {sG}
    s_mul_i32 {sObase}, s3, {8*OHEAD}
    s_mov_b32 {sScale}, 0x3e0293ee""")
    p.ext(kv_reset())

    return p.L

def warm_groups():
    ln = vr(vLane); a0, a1 = vr(T), vr(T+1)
    return [[f"s_lshl_b32 {sT0}, {sG}, 3", f"s_add_u32 {sT0}, {sT0}, {sB}"], [f"s_lshl_b32 {sT0}, {sT0}, 2", f"s_add_u32 {sT0}, {sT0}, {sJ}"],
            [f"s_lshl_b32 {sT0}, {sT0}, 2", f"s_add_u32 {sT0}, {sT0}, {sW}"], [f"s_mul_i32 {sT0}, {sT0}, 9216", f"v_lshlrev_b32 {a0}, 7, {ln}"],
            [f"v_and_b32 {a1}, 0x3ff, {a0}"],
            [f"buffer_load_dword {vr(255)}, {a0}, {sWO}, {sT0} offen ;@dummy", f"s_add_u32 {sT0}, {sT0}, 8192"],
            [f"buffer_load_dword {vr(255)}, {a1}, {sWO}, {sT0} offen ;@dummy"]]
def touch_groups():
    return [[f"s_mul_i32 {sT0}, {sB}, {144*2304}", f"buffer_load_dword {vr(255)}, {vr(vZero)}, {sOUT}, {sT0} offen ;@dummy"],
            [f"buffer_load_dword {vr(255)}, {vr(vZero)}, {sWS}, {sOst} offen ;@dummy"],
            [f"s_lshl_b32 {sT0}, {sBlk}, 3", f"s_add_u32 {sT0}, {sT0}, {sB}"], [f"s_mul_i32 {sT0}, {sT0}, {4*64*3072}", f"s_add_u32 {sT0}, {sT0}, {PART}"],
            [f"buffer_load_dword {vr(255)}, {vr(vZero)}, {sWS}, {sT0} offen ;@dummy"]]

def program(pro, fill, sg):
    p = Prog(); p.L = list(pro)
    n0 = len(p.L)
    nstamp[0] = 2
    def ph(name):
        cur[0] = name; p.ext(st(True))
    def end(): p.ext(st()); p.ext(st(True))
    ex = {}
    if 'a' in OPT["warm"]: ex = {1: warm_groups(), 3: touch_groups()}
    if 't' in OPT["warm"]: ex = {3: touch_groups()}
    if sg == 0:
        allp = [(0,0,0,sRb), (0,0,1,sRb), (1,0,0,sRb), (1,0,1,sRb), (1,1,0,sRb), (1,1,1,sRb), (0,1,0,sRj), (0,1,1,sRj)]
        m = int(OPT["m"])
        Pa, Pb = allp[:m], allp[m:]
        ph("Q0"); q_phase(p, False, 'A', 0, 256, True, fillers=fill); end()
        ph("A0"); a_phase(p, "00", 'Q', 'Q', 0, extra=ex); end()
        ph("Q1"); q_phase(p, False, 'P', 1, 0, False, Pa, (0, 1)); end()
        ph("P0"); p_seg(p, Pa, True, 'A', 0, {1: (1, 1)} if m == 4 else {}); end()
        if m == 4:
            ph("A1"); a_phase(p, "01", 'P', 'P', 0, Pb, (1, 2)); end()
            ph("P1"); p_seg(p, Pb, False, 'F', 2, {2: (0, 2)}); end()
        else:
            ph("A1"); a_phase(p, "01", 'P2', 'P', 0, Pb, (1, 1)); end()
            ph("P1"); p_seg(p, Pb, False, 'F', 2, {1: (1, 2), 4: (0, 2)}); end()
    else:
        Pa = [(0,0,0,sRb), (0,0,1,sRb), (1,0,0,sRb), (1,0,1,sRb), (1,1,0,sRj), (1,1,1,sRj), (0,1,0,sRb), (0,1,1,sRb)]
        ph("Q0"); q_phase(p, True, 'Q', 0, -256, True, fillers=fill); end()
        ph("Q1"); q_phase(p, False, 'A', 0, 0, False); end()
        ph("A0"); a_phase(p, "10", 'Q', 'A', 0, extra=ex); end()
        ph("A1"); a_phase(p, "11", 'A', 'P', 1, Pa, (None, 1)); end()
        ph("P0"); p_seg(p, Pa, True, 'F', 2, {4: (1, 2), 5: (0, 2)}); end()
        p.ext(st())
    p(f"""s_cmp_eq_u32 {sG}, 0
    s_cbranch_scc1 FIN0
    s_cmp_eq_u32 {sG}, 1
    s_cbranch_scc1 FIN1
    s_cmp_eq_u32 {sG}, 2
    s_cbranch_scc1 FIN2
    s_branch FIN3""")
    mark = "BODY_MARK:"
    L_ = p.L[:n0] + [mark] + p.L[n0:]
    L_ = merge_waits(auto_lgkm(auto_vm(L_)))
    bad = check_hazards(L_)
    k = L_.index(mark)
    return L_[:k], L_[k+1:], len(bad)

def main():
    pro = Prog(); fill = [x.strip() for x in prologue(pro)]
    h0, b0, n0 = program(pro.L, fill, 0)
    h1, b1, n1 = program(pro.L, fill, 1)
    assert h0 == h1
    slow = auto_lgkm(slow_code)
    n2 = len(check_hazards(slow))
    fin = []
    cur[0] = "F0"
    for G in range(4):
        nstamp[0] = 2 if OPT["smode"] == "F0" else 8
        if OPT["smode"] not in ("", "F0"): nstamp[0] = 99
        f, n = f_phase(G); fin += f; n2 += n
    body = h0 + [f"s_bitcmp1_b32 {sJ}, 0", "s_cbranch_scc1 PROG1J", "s_branch PROG0", "PROG1J:", "s_branch PROG1",
                 "K_END:", "s_endpgm", "PROG0:"] + b0 + slow[:len(slow)//2] + fin + slow[len(slow)//2:] + ["PROG1:"] + b1
    body = strip(body)
    kn = NAME + "_kernel"
    hdr = open('cdna_kernels/' + NAME + '.s.ref').read().split('; Override launch')[0]
    s = hdr + "; @launch grid=(256,1,1) block=(256,1,1) lds=163840\n"
    s += f'.amdgcn_target "amdgcn-amd-amdhsa--gfx950"\n.text\n.globl {kn}\n.p2align 8\n.type {kn},@function\n{kn}:\n' + "\n".join(body) + "\n"
    s += f""".section .rodata,"a"
.p2align 6
.amdhsa_kernel {kn}
  .amdhsa_next_free_vgpr {NV + NA}
  .amdhsa_next_free_sgpr 102
  .amdhsa_accum_offset {NV}
  .amdhsa_group_segment_fixed_size 0
  .amdhsa_kernarg_size 104
  .amdhsa_user_sgpr_count 2
  .amdhsa_user_sgpr_kernarg_segment_ptr 1
  .amdhsa_system_sgpr_workgroup_id_x 1
.end_amdhsa_kernel
"""
    fn = OPT.get("out", "cdna_kernels/" + NAME + ".s")
    open(fn, "w").write(s)
    print("written", fn, "lines", len(body), "bytes", len(s), "hazards:", n0 + n1 + n2)
main()
```

```python
import re

REG = re.compile(r'^(-|abs\()?([vas])(?:(\d+)|\[(\d+):(\d+)\])\)?$')
def regs_of(tok):
    tok = tok.strip()
    if tok in ('vcc', 'exec', 'm0', 'scc'): return [tok]
    if tok in ('vcc_lo', 'vcc_hi'): return ['vcc']
    if tok in ('exec_lo', 'exec_hi'): return ['exec']
    m = REG.match(tok)
    if not m: return []
    k = m.group(2)
    if m.group(3) is not None: return [f"{k}{m.group(3)}"]
    return [f"{k}{i}" for i in range(int(m.group(4)), int(m.group(5)) + 1)]

TRANS = ('v_exp_f32', 'v_log_f32', 'v_rcp_f32', 'v_rsq_f32', 'v_sqrt_f32', 'v_sin_f32', 'v_cos_f32')
class Ins:
    def __init__(self, text):
        self.text = text
        t = text.split(';')[0].strip()
        self.label = t.endswith(':') or t.startswith('.') or t == ''
        self.op = ''; self.dst = []; self.src = []; self.kind = 'none'
        if self.label: return
        parts = t.split(None, 1)
        op = self.op = parts[0]
        ops = []
        if len(parts) > 1:
            rest = parts[1]
            toks = re.split(r',\s*(?![^\[]*\])', rest)
            for tk in toks:
                sub = tk.strip().split()
                ops.append(sub[0] if sub else '')
            self.mods = ' '.join(toks[-1].strip().split()[1:]) if toks else ''
        else:
            self.mods = ''
        R = [regs_of(o) for o in ops]
        flat = lambda L: [r for x in L for r in x]
        if op.startswith('v_mfma'):
            self.kind = 'mfma'; self.dst = R[0]; self.src = flat(R[1:]); self.A = R[1]; self.B = R[2]; self.C = R[3]
            self.passes = 8 if '32x32' in op else 4
        elif op.startswith('ds_read') or op.startswith('ds_bpermute') or op.startswith('ds_swizzle'):
            self.kind = 'ds'; self.dst = R[0]; self.src = flat(R[1:])
        elif op.startswith('ds_'):
            self.kind = 'ds'; self.src = flat(R)
        elif op.startswith('buffer_load') or op.startswith('global_load'):
            self.kind = 'vmem'
            if ' lds' in ' ' + self.mods or '_lds_' in op:
                self.src = flat(R) + ['m0']; self.dma = True
            else:
                self.dst = R[0]; self.src = flat(R[1:])
        elif op.startswith('buffer_store') or op.startswith('global_store'):
            self.kind = 'vmem'; self.src = flat(R); self.store = True
            self.data = R[0] if op.startswith('buffer') else R[1]
        elif op.startswith('buffer_atomic') or op.startswith('global_atomic'):
            self.kind = 'vmem'; self.src = flat(R)
            if 'sc0' in self.mods: self.dst = R[0]
        elif op.startswith('buffer_') :
            self.kind = 'vmem'
        elif op.startswith('v_'):
            self.kind = 'valu'
            self.dst = list(R[0]); self.src = flat(R[1:])
            if op.startswith('v_permlane') or op.startswith('v_swap'):
                self.dst = R[0] + R[1]; self.src = R[0] + R[1]
            if op.startswith('v_fmac') or op.startswith('v_writelane'): self.src += R[0]
            if op.startswith('v_cmpx'): self.dst += ['exec']
            if '_co_' in op: self.dst += R[1]; self.src = flat(R[2:])
            if op.startswith('v_cndmask') and len(R) == 3: self.src += ['vcc']
        elif op.startswith('s_'):
            self.kind = 'salu'
            if op.startswith('s_load') or op.startswith('s_memtime') or op.startswith('s_memrealtime') or op.startswith('s_buffer_load'):
                self.kind = 'smem'; self.dst = R[0]; self.src = flat(R[1:])
            elif op.startswith(('s_cmp', 's_cbranch', 's_branch', 's_waitcnt', 's_barrier', 's_nop', 's_endpgm', 's_sleep', 's_setprio', 's_bitcmp')):
                self.src = flat(R)
            else:
                self.dst = list(R[0]) if R else []; self.src = flat(R[1:])
                if 'saveexec' in op: self.dst += ['exec']; self.src += ['exec']
        self.trans = op.replace('_e32', '').replace('_e64', '') in TRANS
    def states(self):
        if self.label: return 0
        if self.op == 's_nop': return int(self.text.split(';')[0].split()[1], 0) + 1
        return 1

def check_hazards(lines, verbose=True):
    ins = [Ins(l) for l in lines]
    probs = []
    n = len(ins)
    for i, p in enumerate(ins):
        if p.label: continue
        dist = 0
        for j in range(i + 1, n):
            c = ins[j]
            if c.label: continue
            need = 0
            pd = set(p.dst);
            cs = set(c.src); cd = set(c.dst)
            if p.kind == 'valu':
                vd = {r for r in pd if r[0] in 'va' and r not in ('vcc',)}
                sd = {r for r in pd if r[0] == 's' or r == 'vcc'}
                if c.kind == 'mfma' and vd & cs: need = max(need, 2)
                if c.op.startswith('v_permlane') and vd & cs: need = max(need, 2)
                if c.op.startswith(('v_readfirstlane', 'v_readlane')) and vd & cs: need = max(need, 1)
                if p.trans and c.kind in ('valu',) and not c.trans and vd & cs: need = max(need, 1)
                if p.trans and c.kind in ('mfma',) and vd & cs: need = max(need, 2)
                if c.kind == 'vmem' and sd & cs: need = max(need, 5)
                if c.kind == 'valu' and sd & cs: need = max(need, 2)
                if c.kind == 'salu' and sd & cs: need = max(need, 1)
                if 'exec' in pd and c.kind == 'mfma': need = max(need, 4)
                if 'dpp' in c.text and vd & cs: need = max(need, 2)
            if p.kind == 'mfma':
                big, mid, war = (12, 10, 7) if p.passes == 8 else (8, 6, 3)
                if c.kind == 'mfma':
                    if pd & (set(c.A) | set(c.B)): need = max(need, big)
                    if pd & set(c.C):
                        if not (c.C == p.dst and c.passes == p.passes): need = max(need, mid)
                    elif pd & cd and not (c.dst == p.dst and c.passes == p.passes): need = max(need, mid)
                elif c.kind in ('valu', 'ds', 'vmem'):
                    if pd & (cs | cd): need = max(need, big)
                    if c.kind == 'valu' and set(p.C) & cd: need = max(need, war)
            if p.kind == 'salu' and 'm0' in pd and getattr(c, 'dma', False): need = max(need, 1)
            if getattr(p, 'store', False) and len(p.data) >= 3 and set(p.data) & cd: need = max(need, 2 if c.kind == 'valu' else 1)
            if p.kind == 'ds' and p.op.startswith('ds_write') and c.kind == 'valu' and False: pass
            if need > dist:
                probs.append((i, j, need, dist, p.text, c.text))
            dist += c.states()
            if dist >= 20: break
    if verbose:
        for pr in probs: print("HAZARD need %d have %d:\n   %s\n   %s" % (pr[2], pr[3], pr[4].strip(), pr[5].strip()))
    return probs

def auto_lgkm(lines, group=2, maxcnt=15):
    ins = [Ins(l) for l in lines]
    out = []
    pend = []
    def need_n(c):
        touch = set(c.src) | set(c.dst)
        last = -1
        for k, d in enumerate(pend):
            if d & touch: last = k
        return last
    i = 0
    for i, c in enumerate(ins):
        if c.label:
            out.append(c.text); continue
        if c.op in ('s_waitcnt', '@waitvm'):
            m = re.search(r'lgkmcnt\((\d+)\)', c.text)
            if m:
                N = int(m.group(1))
                if len(pend) > N: pend = pend[len(pend) - N:] if N else []
            out.append(c.text); continue
        last = need_n(c)
        if last >= 0:
            if c.kind == 'mfma' and group > 1:
                seen = 1
                for j in range(i + 1, len(ins)):
                    d = ins[j]
                    if d.label or d.op in ('s_barrier',) or d.op.startswith(('s_cbranch', 's_branch')): break
                    if d.kind == 'mfma':
                        l2 = need_n(d)
                        if l2 > last: last = l2
                        seen += 1
                        if seen >= group: break
            N = len(pend) - 1 - last
            N = min(N, maxcnt)
            out.append(f"    s_waitcnt lgkmcnt({N})")
            pend = pend[len(pend) - N:] if N else []
        if c.kind == 'ds':
            pend.append(set(c.dst))
        elif c.kind == 'smem' and not c.op.startswith('s_mem'):
            pend.append(set(c.dst))
        if len(pend) > maxcnt + 1:
            pass
        out.append(c.text)
    return out

class Prog:
    def __init__(self): self.L = []
    def __call__(self, s):
        for l in s.split('\n'):
            if l.strip(): self.L.append('    ' + l.strip() if not l.strip().endswith(':') else l.strip())
    def ext(self, L):
        for l in L: self(l)

def weave(mf, gaps_ds, gaps_misc, valu, budget=None):
    out = []
    q = list(valu)
    n = len(mf)
    def cost(t):
        t = t.strip()
        if t.startswith('@'): return 1
        if t.split()[0] in TRANS: return 2
        if t.startswith('s_nop'): return int(t.split()[1]) + 1
        return 1
    carry = 0.0
    for i, m in enumerate(mf):
        out.append(m)
        cap = 6 if '32x32' in m else 2
        if budget: cap = budget(i, cap)
        used = 0
        for t in gaps_ds.get(i, []) + gaps_misc.get(i, []):
            out.append(t); used += cost(t)
        used += 0.5
        while q and q[0][1] <= i:
            c = cost(q[0][0])
            must = any(it[2] <= i for it in q)
            if used + c <= cap + carry or must:
                out.append(q.pop(0)[0]); used += c
            else: break
        carry = min(max(cap + carry - used, -1.0), 0.5)
    assert not q, ("valu left over", q[:3])
    return out


def auto_vm(lines, maxcnt=63):
    out = []
    pend = []
    marks = {}; count = [0]
    for l in lines:
        t = l.strip()
        if t.startswith('@waitvm'):
            parts = t.split(None, 2)
            tags = parts[1].split(',')
            extra = parts[2] if len(parts) > 2 else ''
            last = -1
            for k, (tg, d) in enumerate(pend):
                if tg in tags: last = k
            if last >= 0:
                N = len(pend) - 1 - last
                N = min(N, maxcnt)
                out.append(f"    s_waitcnt vmcnt({N}) {extra}".rstrip())
                pend = pend[len(pend) - N:] if N else []
            elif extra:
                out.append(f"    s_waitcnt {extra}")
            continue
        if t.startswith('@waitmark'):
            N = min(count[0] - marks[t.split()[1]], maxcnt)
            out.append(f"    s_waitcnt vmcnt({N}) ;@nocount")
            continue
        m = re.search(r'@mark=(\w+)', l)
        if m: marks[m.group(1)] = count[0]
        c = Ins(l)
        if c.label:
            out.append(l); continue
        if c.op == 's_waitcnt':
            m = re.search(r'vmcnt\((\d+)\)', l)
            if m and '@nocount' not in l:
                N = int(m.group(1))
                if len(pend) > N: pend = pend[len(pend) - N:] if N else []
            out.append(l); continue
        touch = set(c.src) | set(c.dst)
        last = -1
        for k, (tg, d) in enumerate(pend):
            if d & touch: last = k
        if last >= 0:
            N = min(len(pend) - 1 - last, maxcnt)
            out.append(f"    s_waitcnt vmcnt({N})")
            pend = pend[len(pend) - N:] if N else []
        if c.kind == 'vmem' and '@nocount' not in l:
            m = re.search(r'@tag=(\w+)', l)
            pend.append((m.group(1) if m else None, set() if '@dummy' in l else set(c.dst))); count[0] += 1
        out.append(l)
    return out

def merge_waits(lines):
    out = []
    for l in lines:
        t = l.strip()
        if t.startswith('s_waitcnt') and out and out[-1].strip().startswith('s_waitcnt') and '@' not in t and '@' not in out[-1]:
            a = dict(re.findall(r'(\w+)\((\d+)\)', out[-1])); b = dict(re.findall(r'(\w+)\((\d+)\)', t))
            for k, v in b.items(): a[k] = str(min(int(v), int(a.get(k, 99))))
            out[-1] = '    s_waitcnt ' + ' '.join(f"{k}({v})" for k, v in a.items())
        else: out.append(l)
    return out
def strip(lines):
    return [l.split(';')[0].strip() for l in lines if l.split(';')[0].strip()]


def fill_valu(skel, ops, cost_of=None):
    gaps = []; cur = None; head = []
    for l in skel:
        if l.strip().startswith('v_mfma'):
            cur = [l]; gaps.append(cur)
        elif cur is None: head.append(l)
        else: cur.append(l)
    def cost(t):
        t = t.strip()
        if t.endswith(':'): return 0
        if t.split()[0] in TRANS: return 8
        if t.startswith('s_nop'): return 4 * (int(t.split()[1]) + 1)
        return 4
    n = len(gaps)
    free = [(32 if '32x32' in g[0] else 16) - 8 - sum(cost(x) for x in g[1:]) for g in gaps]
    done = {}; seq = [0]
    out = list(head)
    pend = list(range(len(ops)))
    lastplaced = [None]
    for gi, g in enumerate(gaps):
        f = free[gi]
        placed = []
        def ready():
            r = []
            for k in pend:
                o = ops[k]
                if o['lo'] > gi: continue
                if any(d not in done for d in o['deps']): continue
                if lastplaced[0] in o['deps'] and cost(ops[lastplaced[0]]['text']) == 8 and done[lastplaced[0]] == gi: continue
                r.append(k)
            return r
        while True:
            r = ready()
            if not r:
                must = [k for k in pend if ops[k]['hi'] <= gi]
                if must:
                    placed.append('s_nop 0'); lastplaced[0] = None; f -= 4
                    if not ready(): raise Exception(("stuck", gi, ops[must[0]]))
                    continue
                break
            best = None
            behind = False
            for h in sorted(set(ops[k]['hi'] for k in pend if ops[k]['lo'] <= gi)):
                work = sum(cost(ops[k]['text']) for k in pend if ops[k]['hi'] <= h)
                room = max(f, 0) + sum(max(x, 0) for x in free[gi+1:h+1])
                if work > room: behind = True
            fit = [k for k in r if cost(ops[k]['text']) <= f]
            r.sort(key=lambda k: (ops[k]['hi'], ops[k]['pri']))
            fit.sort(key=lambda k: (ops[k]['hi'], ops[k]['pri']))
            must = any(ops[k]['hi'] <= gi for k in pend)
            if fit:
                k = fit[0]
            elif must or (behind and f > 0): k = r[0]
            else: break
            placed.append(ops[k]['text']); f -= cost(ops[k]['text']); done[k] = gi; pend.remove(k); lastplaced[0] = k
        body = g[1:]
        tail = []
        while body and body[-1].strip().startswith('s_waitcnt') and 'lgkmcnt' in body[-1] and 'vmcnt' not in body[-1]:
            tail.insert(0, body.pop())
        out += [g[0]] + body + placed + tail
        if tail or not placed: lastplaced[0] = None
        lastplaced[0] = None
    assert not pend, [ops[k] for k in pend[:3]]
    return out


def icost(t):
    t = t.strip()
    if '\n' in t: return sum(icost(x) for x in t.split('\n'))
    if t.endswith(':'): return 0
    op = t.split()[0]
    if op in TRANS: return 8
    if op == 's_nop': return 4 * (int(t.split()[1]) + 1)
    if op == 's_barrier': return 32
    if op.startswith(('buffer_', 'global_')): return 8
    if op.startswith('s_memtime') or op.startswith('s_memrealtime'): return 0
    return 4

def schedule(pre, mf, ds, misc, ops, group=2, leftover=False, vmsp=64):
    skel = list(pre)
    for i, m in enumerate(mf):
        skel.append(m); skel += ds.get(i, [])
    skel = [x.strip() for x in auto_lgkm(skel, group=group)]
    gaps = []; cur = None; head = []
    for l in skel:
        if l.startswith('v_mfma'):
            cur = [l]; gaps.append(cur)
        elif cur is None: head.append(l)
        else: cur.append(l)
    n = len(gaps)
    def gcost(g):
        c = 0; prev = ''
        for x in g:
            c += icost(x)
            if x.startswith('ds_') and prev.startswith('ds_'): c += 8 if 'b128' in prev else 4
            prev = x
        return c
    free = [(32 if '32x32' in g[0] else 16) - 8 - gcost(g[1:]) for g in gaps]
    mplace = [[] for _ in range(n)]
    pos = 0
    tm = [0]
    for g_ in gaps: tm.append(tm[-1] + (32 if '32x32' in g_[0] else 16))
    lastvm = -999
    for text, lo, hi in misc:
        g = max(pos, lo)
        c = icost(text)
        if 'buffer_' in text:
            while g < min(hi, n - 1) and tm[g] - lastvm < vmsp: g += 1
        small = lambda k: '32x32' not in gaps[k][0]
        cand = [k for k in range(g, min(max(hi, g), g + 3) + 1) if k < n and free[k] >= (4 if (small(k) and c <= 8) else min(c, 16))]
        if cand: g = cand[0]
        else:
            rng = [k for k in range(g, min(max(hi, g), g + 3) + 1) if k < n] or [n - 1]
            g = max(rng, key=lambda k: (free[k], -k))
        mplace[g].append(text); free[g] -= c; pos = g
        if 'buffer_' in text: lastvm = tm[g]
    done = {}; out = list(head); pend = list(range(len(ops)))
    for gi, g in enumerate(gaps):
        f = free[gi]; placed = []; last = None
        def ready():
            return [k for k in pend if ops[k]['lo'] <= gi and all(d in done for d in ops[k]['deps'])
                    and not (last in ops[k]['deps'] and icost(ops[last]['text']) == 8)]
        while True:
            r = ready()
            must = any(ops[k]['hi'] <= gi for k in pend)
            if not r:
                if must:
                    placed.append('s_nop 0'); last = None; f -= 4
                    assert ready(), ("stuck", gi)
                    continue
                break
            behind = False
            for h in sorted(set(ops[k]['hi'] for k in pend if ops[k]['lo'] <= gi)):
                work = sum(icost(ops[k]['text']) for k in pend if ops[k]['hi'] <= h)
                room = max(f, 0) + sum(max(x, 0) for x in free[gi+1:h+1])
                if work > room: behind = True
            key = lambda k: (ops[k]['hi'], ops[k]['pri'])
            fit = sorted([k for k in r if icost(ops[k]['text']) <= f], key=key)
            if fit: k = fit[0]
            elif must or (behind and f > 0): k = sorted(r, key=key)[0]
            else: break
            placed.append(ops[k]['text']); f -= icost(ops[k]['text']); done[k] = gi; pend.remove(k); last = k
        body = list(g[1:]); tail = []
        while body and body[-1].startswith('s_waitcnt') and 'lgkmcnt' in body[-1] and 'vmcnt' not in body[-1]:
            tail.insert(0, body.pop())
        out += [g[0]] + body + mplace[gi] + placed + tail
    if leftover: return out, [ops[k]['text'] for k in sorted(pend, key=lambda k: ops[k]['pri'])]
    assert not pend, [ops[k] for k in pend[:3]]
    return out

def fix_m0(lines):
    out = []
    for l in lines:
        t = l.strip()
        if t.startswith('buffer_load') and ' lds' in t and out and re.match(r's_\w+ m0,', out[-1].strip()): out.append('s_nop 0')
        out.append(l)
    return out

def stream(groups, lo, hi):
    r = []; n = len(groups)
    for k, grp in enumerate(groups):
        t = lo + (k * (hi - lo + 1)) // max(n, 1)
        for x in grp: r.append((x, t, hi))
    return r


def place_reads(mf, items, fixed=None, small=1, big=3):
    ds = {g: list(v) for g, v in (fixed or {}).items()}
    cnt = {}; pos = 0
    for tgt, last, line in items:
        g = max(pos, tgt)
        while g < last and cnt.get(g, 0) >= (big if '32x32' in mf[g] else small): g += 1
        cnt[g] = cnt.get(g, 0) + 1
        ds.setdefault(g, []).append(line); pos = g
    return ds
```

```python
import sys
from asmlib import *

NAME = "concat_heads__mha_block_cached__mha_block_cached__near_ridge"
OPT = dict(kv="nt", w="", ost="sc1", old="sc1", smode="", warm="a", sleep="4", fsleep="1", m="4")
for a in sys.argv[1:]:
    if "=" in a:
        k, v = a.split("=", 1); OPT[k] = v.replace("+", " ")
KV_FLAGS, W_FLAGS, OST, OLD = OPT["kv"], OPT["w"], OPT["ost"], OPT["old"]
STAMP = "stamp" in sys.argv

def vr(b, n=1): return f"v{b}" if n == 1 else f"v[{b}:{b+n-1}]"
def ar(b, n=1): return f"a{b}" if n == 1 else f"a[{b}:{b+n-1}]"
K = 1024
OHEAD = 36864
WHEAD = 128 * 1152
OSIZE = 512 * OHEAD
PART = OSIZE
PSIZE = 64 * 64 * 3 * 1024
FLAGS = OSIZE + PSIZE
WSSIZE = FLAGS + 16384
sX, sK, sV, sWQ, sWS, sWO, sOUT, sDBG = "s[8:11]", "s[12:15]", "s[16:19]", "s[20:23]", "s[24:27]", "s[28:31]", "s[32:35]", "s[36:37]"
names = ("sW sW4096 sXm0 sPair sKoff sVoff sWQoff sXoff sStage sB sBlk sG sJ sXbase sWQbase sOst sRetry sStage0 sWOm0 sWOoff "
         "sOldA sOldB sObase sWObase sFlG sFlS sRb sRj").split()
for i, n in enumerate(names): globals()[n] = f"s{38+i}"
sScale = "s4"
sT0, sT1, sT2, sT3 = "s3", "s6", "s7", "s5"
sM = "s[66:67]"; sM0 = "s66"
STB = 68; NST = 17
O = 0; S = 64; P = 96; QR = 112; S8 = 144; P8 = 152; NEGM = 156; NEGM8 = 172; L = 176; L8 = 177; T = 178
aK = 186; aK8 = 194; aV = 198; aV8 = 202; aWQ = 210; aX = 218; aX8 = 220
dK = 222; dV = 226; dWQ = 228; dX = 232
vLin = 237; vOst = 238; vQ8w = 239; vL8w = 240; vL8r = 241; vLane = 242; vZero = 243; dWO = 244; vInit = 253
NV = 256
aQ8 = 0; aO8 = 16; aPark = 48; aPacc = 96; aPool = 180; NPOOL = 12; aOnes = 228; aL = 232; aL8 = 236
NA = 240
XSLOT = [64*K, 44*K, 84*K]; XBASE = 44*K
WSLOT = [128*K, 144*K, 112*K]; WBASE = 112*K
Q8BUF = 104*K; L8BUF = 84*K; MRG = 96*K; O8SLOT = 144*K

nstamp = [2]; cur = [""]
def st(detail=False):
    if not STAMP or nstamp[0] >= NST - 2: return []
    if detail != (OPT["smode"] != ""): return []
    if detail and cur[0] != OPT["smode"]: return []
    k = nstamp[0]; nstamp[0] += 1
    return [f"s_mem{'real' if ('delay' in OPT or 'rt' in OPT) else ''}time s[{STB+2*k}:{STB+2*k+1}]"]
lab = [0]
def newlab():
    lab[0] += 1; return lab[0]

def q_dma(slot, tag):
    g = []
    t = f";@tag={tag}"
    g.append([f"s_mul_i32 {sWQoff}, {sStage}, {64*8192}", f"s_add_u32 {sWQoff}, {sWQoff}, {sWQbase}"])
    g.append([f"s_lshl_b32 {sXoff}, {sStage}, 7", f"s_add_u32 {sXoff}, {sXoff}, {sXbase}"])
    g.append([f"s_add_u32 m0, {sW4096}, {WSLOT[slot]}", f"s_add_u32 {sStage}, {sStage}, 1",
              f"buffer_load_dwordx4 {vr(dWQ)}, {sWQ}, {sWQoff} offen {W_FLAGS} lds {t}"])
    for i in range(1, 4):
        g.append([f"buffer_load_dwordx4 {vr(dWQ+i)}, {sWQ}, {sWQoff} offen offset:{i*1024} {W_FLAGS} lds {t}"])
    g.append([f"s_add_u32 m0, {sXm0}, {XSLOT[slot]}", f"s_cmp_eq_u32 {sStage}, 9\ns_cselect_b32 {sStage}, 0, {sStage}",
              f"buffer_load_dwordx4 {vr(dX)}, {sX}, {sXoff} offen {W_FLAGS} lds {t}"])
    g.append([f"buffer_load_dwordx4 {vr(dX+1)}, {sX}, {sXoff} offen offset:1024 {W_FLAGS} lds {t}"])
    for i in range(2, 4):
        g.append([f"buffer_load_dwordx4 {vr(dX+i)}, {sX}, {sXoff} offen offset:{i*1024} {W_FLAGS} lds {t}"])
    g.append([f"s_add_u32 m0, {sXm0}, {XSLOT[slot] + 4096}",
              f"buffer_load_dwordx4 {vr(dX+4)}, {sX}, {sXoff} offen {W_FLAGS} lds {t}"])
    return g

def u_dma(e):
    g = []
    t = f";@tag=u{e}"
    if e <= 7:
        g.append([f"s_add_u32 m0, {sW4096}, {(e % 4) * 16384}", f"s_add_u32 {sKoff}, {sKoff}, 16384",
                  f"buffer_load_dwordx4 {vr(dK)}, {sK}, {sKoff} offen {KV_FLAGS} lds {t}"])
        for i in range(1, 4):
            g.append([f"buffer_load_dwordx4 {vr(dK+i)}, {sK}, {sKoff} offen offset:{i*1024} {KV_FLAGS} lds {t}"])
    if e >= 1:
        g.append([f"s_add_u32 m0, {sW4096}, {65536 + ((e-1) % 4) * 16384}", f"s_add_u32 {sVoff}, {sVoff}, 16384",
                  f"buffer_load_dwordx4 {vr(dV)}, {sV}, {sVoff} offen {KV_FLAGS} lds {t}"])
        for i in range(1, 4):
            g.append([f"buffer_load_dwordx4 {vr(dV+(i&1))}, {sV}, {sVoff} offen offset:{i*1024} {KV_FLAGS} lds {t}"])
    return g
def kv_reset(extra=0):
    return [f"s_add_u32 {sKoff}, {sPair}, {(extra - 16384) & 0xffffffff}", f"s_mov_b32 {sVoff}, {sKoff}"]

def stage_off(stg, dst, size, base):
    c, sg, idx, r = stg
    sT1 = dst
    if c == 4:
        return [[f"s_add_u32 {sT1}, {r}, {idx}", f"s_and_b32 {sT1}, {sT1}, 3"],
                [f"s_mul_i32 {sT1}, {sT1}, {2*size}", f"s_add_u32 {dst}, {sT1}, {base}"]]
    return [[f"s_xor_b32 {sT1}, {r}, {idx}", f"s_mul_i32 {sT1}, {sT1}, {4*size}"],
            [f"s_add_u32 {sT1}, {sT1}, {(2*c+sg)*size}", f"s_add_u32 {dst}, {sT1}, {base}"]]
def wo_dma(stg, n):
    t = f";@tag=wo{n}"
    g = stage_off(stg, sWOoff, WHEAD, sWObase)
    for i in range(9):
        pre = [f"s_add_u32 m0, {sWOm0}, {(n%4)*36864 + (i//4)*4096}"] if i % 4 == 0 else []
        off = f"offset:{(i%4)*1024} " if i % 4 else ""
        g.append(pre + [f"buffer_load_dwordx4 {vr(dWO+i)}, {sWO}, {sWOoff} offen {off}{W_FLAGS} lds {t}"])
    return g
def o8_dma(stg, n):
    g = stage_off(stg, sWOoff, OHEAD, sObase)
    g.append([f"s_lshr_b32 {sT1}, {sW4096}, 2", f"s_add_u32 {sWOoff}, {sWOoff}, {sT1}"])
    g.append([f"s_add_u32 m0, {sT1}, {O8SLOT + (n%4)*4096}", f"s_add_u32 {sWOoff}, {sWOoff}, 32768",
              f"buffer_load_dwordx4 {vr(vLin)}, {sWS}, {sWOoff} offen {OLD} lds ;@tag=wo{n}"])
    return g
def oset(stages, k, fin):
    return aO8 + 8 * (k & 3) if (fin and k >> 2 == len(stages) - 1) else aPark + 8 * (k % 4)
def oloads(stages, k, fin=False):
    n, ks = k >> 2, k & 3
    g = []
    if ks == 0:
        g += stage_off(stages[n], sOldA, OHEAD, sObase)
        g.append([f"s_lshl_b32 {sOldB}, {sW4096}, 1", f"s_add_u32 {sOldA}, {sOldA}, {sOldB}", f"s_add_u32 {sOldB}, {sOldA}, 4096"])
    for r, so in enumerate((sOldA, sOldB)):
        g.append([f"buffer_load_dwordx4 {ar(oset(stages, k, fin)+4*r,4)}, {vr(vLin)}, {sWS}, {so} offen offset:{ks*1024} {OLD} ;@tag=o{k}"])
    return g
LAO = 3
def p_pre3(stages):
    g = o8_dma(stages[0], 0)
    for k in range(LAO): g += oloads(stages, k)
    return g

def spread(groups, gaps, misc):
    n = len(groups)
    for k, grp in enumerate(groups):
        misc.setdefault(gaps[(k * len(gaps)) // n], []).extend(grp)

def signal(val, line=None, own=None):
    n = newlab()
    line = line or sFlG; own = own or sJ
    return [f"s_cmp_lg_u32 {sW}, 0", f"s_cbranch_scc1 SIG{n}", "s_mov_b64 exec, 1", f"v_mov_b32 {vr(T+7)}, {val}",
            f"s_lshl_b32 {sM0}, {own}, 2", f"s_add_u32 {sM0}, {sM0}, {line}",
            f"buffer_store_dword {vr(T+7)}, {vr(vZero)}, {sWS}, {sM0} offen sc1 ;@nocount", "s_mov_b64 exec, -1", f"SIG{n}:"]
def flag_load(line):
    n = newlab()
    return n, [f"s_cmp_lg_u32 {sW}, 0", f"s_cbranch_scc1 FL{n}",
               f"buffer_load_dwordx4 {vr(T+2,4)}, {vr(vZero)}, {sWS}, {line} offen sc1", f"FL{n}:"]
def flag_check(n, line, cls, val):
    m = newlab()
    if cls is None: mn = [f"v_min_u32 {vr(T+6)}, {vr(T+2)}, {vr(T+3)}", f"v_min3_u32 {vr(T+6)}, {vr(T+6)}, {vr(T+4)}, {vr(T+5)}"]
    else: mn = [f"v_min_u32 {vr(T+6)}, {vr(T+2+cls)}, {vr(T+4+cls)}"]
    ld = [f"buffer_load_dwordx4 {vr(T+2,4)}, {vr(vZero)}, {sWS}, {line} offen sc1 ;@nocount", "s_waitcnt vmcnt(0) ;@nocount"]
    o = [f"s_cmp_lg_u32 {sW}, 0", f"s_cbranch_scc1 CE{m}", f"s_mov_b32 {sT3}, 0x20000"]
    o += [f"@waitmark m{n}"] if n is not None else ld
    o += [f"CL{m}:"] + mn + ["s_nop 0", f"v_readfirstlane_b32 {sM0}, {vr(T+6)}", "s_nop 0", f"s_cmp_ge_u32 {sM0}, {val}",
          f"s_cbranch_scc1 CE{m}", f"s_sleep {OPT['sleep']}"] + ld + [f"s_sub_u32 {sT3}, {sT3}, 1", f"s_cbranch_scc0 CL{m}", f"CE{m}:"]
    return o

def gate(t):
    if not t: return []
    n = newlab()
    return [f"s_add_u32 {sT3}, s{STB+2}, {int(float(t)*100)}", f"GT{n}:", f"s_memrealtime {sM}", "s_waitcnt lgkmcnt(0)", f"s_sub_u32 {sM0}, {sM0}, {sT3}",
            f"s_cmp_lt_i32 {sM0}, 0", f"s_cbranch_scc1 GT{n}"]
def chain(lines, lo, hi):
    return [dict(text=t, lo=lo, hi=hi, deps=[k-1] if k else [], pri=k) for k, t in enumerate(lines)]

def q_phase(p, park, nxt, sig, wqstep, firstq, stages=None, chk=None, fillers=()):
    dq8 = aPark + 32 if park else aQ8
    NW = 8; LAF = int(OPT.get('qlaf', 5))
    def xoff(i): return XSLOT[i % 3] - XBASE
    def wrd(f, i, s, D):
        wo = WSLOT[i % 3] - WBASE + s * 8192
        return [f"ds_read_b64_tr_b16 {ar(f+2*u,2)}, {vr(aWQ+D)} offset:{wo+u*1024}" for u in range(2)]
    def xset(i, s): return aPacc + 12 * ((2*i + s) % 4)
    def xrd(i, s, r):
        a, o = (aX + s, r * 2048) if r < 2 else (aX8 + s, 0)
        return f"ds_read_b128 {ar(xset(i, s)+4*r,4)}, {vr(a)} offset:{xoff(i)+o}"
    p("@waitvm q0")
    if firstq:
        n = newlab()
        p(f"""s_lshl_b32 {sT0}, {sG}, 2
        s_add_u32 {sT0}, {sT0}, {sJ}
        s_lshl_b32 {sT0}, {sT0}, 2
        s_add_u32 {sT0}, {sT0}, {sW}
        s_cmp_lg_u32 {sT0}, 3
        s_cbranch_scc1 NOPUB{n}
        s_mov_b64 exec, 1
        v_mov_b32 {vr(T+7)}, 1
        global_store_dword {vr(vInit)}, {vr(T+7)}, {sDBG} sc1 ;@nocount
        s_mov_b64 exec, -1
        NOPUB{n}:""")
    p("s_barrier")
    p.ext(st(True))
    mf = []; misc = []; items = []; fixed = {}
    fl = None
    if nxt == 'P': fl, flcode = flag_load(sFlG)
    fr = []
    accend = {}; sstart = {}
    for i in range(9):
        sstart[i] = len(mf)
        order = [(s, D) for s in range(2) for D in range(8)] if i < 8 else [(s, D) for D in range(8) for s in range(2)]
        for s, D in order:
            f = aPool + 4 * (len(fr) % NW)
            xl = [xrd(i, s, r) for r in range(3)] if D == 0 else []
            fr.append((i, len(mf), xl[:1] + wrd(f, i, s, D) + xl[1:]))
            for r in range(3 if D < 2 else 2):
                acc = O + 8*D + 4*r if r < 2 else S + 4*D
                c = "0" if (i == 0 and s == 0) else vr(acc, 4)
                mf.append(f"v_mfma_f32_16x16x32_bf16 {vr(acc,4)}, {ar(f,4)}, {ar(xset(i, s)+4*r,4)}, {c}")
                accend[(D, r == 2)] = len(mf) - 1
    n = len(mf); sstart[9] = n
    bars = {0: -1}
    pre = []
    for F, (i, c, lines) in enumerate(fr):
        if F < LAF: pre += lines; continue
        tgt = fr[F - LAF][1]
        if F % 16 == 0:
            bars[i] = tgt + int(OPT.get('qbo', 1))
            tags = f"q{i}" + (",ost" if (sig and i == 1) else "")
            chkc = flag_check(fl, sFlG, *chk) if (nxt == 'P' and i == 8) else []
            if i == 7 and nxt == 'A' and not firstq: chkc = gate(OPT.get('g1'))
            fixed[bars[i]] = chkc + [f"@waitvm {tags} lgkmcnt(0)", "s_barrier"] + st(True)
        early = int(OPT.get('qearly', 4)) if (F % 16 >= 16 - 3 and i < 8) else 0
        for k, x in enumerate(lines):
            t_ = max(tgt - early - (1 if len(lines) > 2 else 0) + k, bars[i] + 1)
            items.append((t_, t_ + int(OPT.get('qsl', 1)), x))
    items.sort(key=lambda x: 0)
    ds = place_reads(mf, items, fixed)
    bars[9] = n
    for i in range(9):
        if i <= 6: g = q_dma((i + 2) % 3, f"q{i+2}")
        elif nxt == 'Q': g = q_dma(i - 7, f"q{i-7}")
        elif nxt == 'A': g = u_dma(i - 7)
        else: g = wo_dma(stages[0], 0) if i == 7 else p_pre3(stages) + wo_dma(stages[1], 1)
        if i == 7: g = [[f"s_add_u32 {sWQbase}, {sWQbase}, {wqstep & 0xffffffff}"]] + g
        if nxt == 'P' and i == 6: g = g + [["\n".join(flcode)]]
        if sig and i == 1: misc.append(("\n".join(signal(sig)), bars[1] + 1, bars[1] + 2))
        misc += stream(g, bars[i] + 1, bars[i+1] - 1)
    ops = chain(fillers, 0, sstart[7] - 12)
    def conv(acc, dst, cnt, lo, pri, swap):
        b = len(ops)
        for j in range(cnt): ops.append(dict(text=f"v_mul_f32 {vr(acc+j)}, {sScale}, {vr(acc+j)}", lo=lo, hi=10**6, deps=[], pri=pri + j))
        for j in range(cnt // 2): ops.append(dict(text=f"v_cvt_pk_bf16_f32 {vr(dst+j)}, {vr(acc+2*j)}, {vr(acc+2*j+1)}", lo=lo, hi=10**6, deps=[b+2*j, b+2*j+1], pri=pri + 2*j + 1.5))
    conv(S, S + 16, 8, accend[(1, True)] + 5, 1000, False)
    for D in range(8): conv(O + 8*D, QR + 4*D, 8, max(accend[(D, False)], accend[(1, True)]) + 5, 1100 + 100*D, True)
    W, left = schedule(pre, mf, ds, misc, ops, group=int(OPT.get('qgrp', 4)), leftover=True, vmsp=0)
    p.ext(W)
    p.ext(st(True))
    p("s_nop 3")
    p.ext(left)
    p(f"ds_write_b64 {vr(vQ8w)}, {vr(S+16,2)}")
    p(f"ds_write_b64 {vr(vQ8w)}, {vr(S+18,2)} offset:512")
    if firstq:
        m = newlab()
        p(f"""s_cmp_lg_u32 {sW}, 0
        s_cbranch_scc1 NORD{m}
        global_load_dword {vr(vInit+1)}, {vr(vInit)}, {sDBG} sc1 ;@nocount
        NORD{m}:""")
    p(f"v_add_u32 {vr(T)}, {Q8BUF}, {vr(vLin)}")
    if nxt == 'A':
        for j in range(16): p(f"v_mov_b32 {vr(NEGM+j)}, 0")
        for j in range(4): p(f"v_mov_b32 {vr(NEGM8+j)}, 0")
    for D in range(8):
        p(f"v_permlane16_swap_b32 {vr(QR+4*D)}, {vr(QR+4*D+2)}")
        p(f"v_permlane16_swap_b32 {vr(QR+4*D+1)}, {vr(QR+4*D+3)}")
    if park:
        for j in range(32): p(f"v_accvgpr_write_b32 {ar(aPark+j)}, {vr(QR+j)}")
    p("@waitvm u0 lgkmcnt(0)" if nxt == 'A' else "s_waitcnt lgkmcnt(0)")
    p("s_barrier")
    for s in range(4):
        p(f"ds_read_b128 {ar(dq8+4*s,4)}, {vr(T)} offset:{s*1024}")

slow_code = []
def a_phase(p, inst, prev, nxt, sig, stages=None, chk=None, extra=None):
    LA = int(OPT.get('la', 10)); GRP = int(OPT.get('grp', 4))
    mf = []; frag = []; stepstart = {}; qk8end = {}
    ds = {}; misc = []
    LM = OPT.get('lsum', 'mfma') == 'mfma'
    def add(text_fn, reads_fn):
        f = aPool + 4 * (len(mf) % NPOOL)
        mf.append(text_fn(f)); frag.append(reads_fn(f))
    def qk(t, sl):
        sb = S + 16 * (t & 1)
        c = vr(NEGM, 16) if sl == 0 else vr(sb, 16)
        off = ((t >> 1) % 4) * 16384 + (t & 1) * 8192
        add(lambda f: f"v_mfma_f32_32x32x16_bf16 {vr(sb,16)}, {ar(f,4)}, {vr(QR+4*sl,4)}, {c}",
            lambda f: [f"ds_read_b128 {ar(f,4)}, {vr(aK+sl)} offset:{off}"])
    def pv(t, k):
        tp, D = k >> 2, k & 3
        c = "0" if (t == 0 and tp == 0) else vr(O + 16*D, 16)
        off = ((t >> 1) % 4) * 16384 + (t & 1) * 8192 + tp * 4096
        add(lambda f: f"v_mfma_f32_32x32x16_bf16 {vr(O+16*D,16)}, {ar(f,4)}, {vr(P+8*(t&1)+4*tp,4)}, {c}",
            lambda f: [f"ds_read_b64_tr_b16 {ar(f+2*u,2)}, {vr(aV+D)} offset:{off+u*2048}" for u in range(2)])
    def qk8(m, k):
        kt, sp = k >> 2, k & 3
        c = vr(NEGM8, 4) if sp == 0 else vr(S8 + 4*kt, 4)
        off = (m & 1) * 32768 + kt * 4096
        add(lambda f: f"v_mfma_f32_16x16x32_bf16 {vr(S8+4*kt,4)}, {ar(f,4)}, {ar(aQ8+4*sp,4)}, {c}",
            lambda f: [f"ds_read_b128 {ar(f,4)}, {vr(aK8+sp)} offset:{off}"])
    def pv8(m, D):
        c = "0" if m == 0 else ar(aO8 + 4*D, 4)
        off = (m & 1) * 32768
        add(lambda f: f"v_mfma_f32_16x16x32_bf16 {ar(aO8+4*D,4)}, {ar(f,4)}, {vr(P8,4)}, {c}",
            lambda f: [f"ds_read_b64_tr_b16 {ar(f+2*u,2)}, {vr(aV8+D)} offset:{off+u*4096}" for u in range(2)])
    def lm(t, tp):
        add(lambda f: f"v_mfma_f32_16x16x32_bf16 {ar(aL,4)}, {ar(aOnes,4)}, {vr(P+8*(t&1)+4*tp,4)}, {'0' if (t == 0 and tp == 0) else ar(aL,4)}", lambda f: [])
    def lm8(m, _):
        add(lambda f: f"v_mfma_f32_16x16x32_bf16 {ar(aL8,4)}, {ar(aOnes,4)}, {vr(P8,4)}, {'0' if m == 0 else ar(aL8,4)}", lambda f: [])
    for u in range(-1, 17):
        stepstart[u] = len(mf)
        seq = []
        for k in range(9):
            if 0 <= u + 1 <= 15 and k < 8: seq.append((qk, u + 1, k))
            if 0 <= u - 1 <= 15 and k >= 1: seq.append((pv, u - 1, k - 1))
        ex = []
        if u >= 1 and u % 4 == 1 and u <= 13: ex = [(qk8, u // 4, k) for k in range(8)]
        if u >= 4 and u % 4 == 0: ex = [(pv8, u // 4 - 1, k) for k in range(8)]
        merged = []
        for k, it in enumerate(seq):
            merged.append(it)
            if ex and k >= (0 if u == 16 else 1): merged.append(ex.pop(0))
        merged += ex
        if LM and 0 <= u - 1 <= 15:
            L0 = len(merged)
            if u == 16: merged = merged[:2] + [(lm, u-1, 0), (lm8, 3, 0)] + merged[2:8] + [(lm, u-1, 1)] + merged[8:]
            else:
                merged = merged[:L0-5] + [(lm, u-1, 0)] + merged[L0-5:L0-1] + [(lm, u-1, 1)] + merged[L0-1:]
                if u % 4 == 0: merged = merged[:L0-3] + [(lm8, u//4 - 1, 0)] + merged[L0-3:]
        for fn, a, b in merged:
            if fn is qk8: qk8end[a] = len(mf)
            fn(a, b)
    stepstart[17] = len(mf)
    n = len(mf)
    bar = {}
    fl = None
    if nxt == 'P': fl, flcode = flag_load(sFlG)
    pre = []
    for i in range(n):
        if i - LA < 0: pre += frag[i]
    for e in range(1, 9):
        g = stepstart[2*e - 1] - LA
        while '32x32' not in mf[g]: g += 1
        bar[e] = g
    fixed = {}
    for e in range(1, 9):
        chkc = flag_check(fl, sFlG, *chk) if (nxt == 'P' and e == 8) else []
        fixed[bar[e]] = chkc + [f"@waitvm u{e}" + (" lgkmcnt(0)" if e == 8 else ""), "s_barrier"] + st(True)
    items = []
    for i in range(LA, n):
        e = max(e for e in range(0, 9) if e == 0 or stepstart[2*e - 1] <= i)
        tgt = i - LA
        if e + 1 <= 8: last = min(i - LA + 2, bar[e+1] - 1) if tgt < bar[e+1] else i - LA + 2
        else: last = min(i - LA + 2, n - 6)
        if e >= 1: tgt = max(tgt, bar[e] + 1)
        for x in frag[i]: items.append((tgt, max(last, tgt), x))
    ds = place_reads(mf, items, fixed)
    assert not any('b128' in x for g in ds if g >= bar[8] for x in ds[g]), "K reads behind the last barrier"
    bar[0] = -1; bar[9] = n - 1
    ds.setdefault(n - 4, []).extend(["s_waitcnt lgkmcnt(0)", "s_barrier"])
    for e in range(0, 9):
        if e <= 6: g = u_dma(e + 2)
        elif nxt == 'P':
            w0 = wo_dma(stages[0], 0)
            g = [["\n".join(flcode)]] + w0[:7] if e == 7 else w0[7:] + p_pre3(stages) + wo_dma(stages[1], 1)
        elif nxt == 'A': g = ([kv_reset(131072)] if e == 7 else []) + u_dma(e - 7)
        else: g = q_dma(e - 7, f"q{e-7}")
        if extra and e in extra: g = g + extra[e]
        misc += stream(g, bar[e] + 1, bar[e+1] - 1 - (int(OPT.get('amg', 12)) if 1 <= e <= 7 else 0))
    ops = []
    def smx(sb, pb, l, cnt, lo, hi):
        b = len(ops)
        for j in range(cnt): ops.append(dict(text=f"v_exp_f32 {vr(sb+j)}, {vr(sb+j)}", lo=lo, hi=hi, deps=[], pri=j))
        if not LM:
            for j in range(cnt): ops.append(dict(text=f"v_add_f32 {vr(l)}, {vr(l)}, {vr(sb+j)}", lo=lo, hi=hi, deps=[b+j], pri=j+2.5))
        for j in range(0, cnt, 2):
            ops.append(dict(text=f"v_cvt_pk_bf16_f32 {vr(pb+j//2)}, {vr(sb+j)}, {vr(sb+j+1)}", lo=lo, hi=hi, deps=[b+j, b+j+1], pri=j+2.4))
    for u in range(0, 16):
        smx(S + 16*(u&1), P + 8*(u&1), L, 16, stepstart[u] + (3 if u == 0 else int(OPT.get('lo', 0))), stepstart[u+1] - 1)
        if u % 4 == 1: smx(S8, P8, L8, 8, qk8end[u//4] + 3, stepstart[u+3] - 1)
    if prev != 'Q':
        for j in range(16): p(f"v_mov_b32 {vr(NEGM+j)}, 0")
        for j in range(4): p(f"v_mov_b32 {vr(NEGM8+j)}, 0")
        p("@waitvm u0" + (",ost" if sig else ""))
        p("s_barrier")
        if sig: p.ext(signal(sig))
    p(f"s_mov_b32 {sRetry}, 0")
    p(f"ATT{inst}:")
    p(f"s_mov_b32 {sStage}, {sStage0}")
    if not LM:
        p(f"v_mov_b32 {vr(L)}, 0")
        p(f"v_mov_b32 {vr(L8)}, 0")
    p.ext(schedule(pre, mf, ds, misc, ops, group=GRP, vmsp=int(OPT.get('avm', 0))))
    p.ext(st(True))
    t = T
    if LM:
        p(f"""v_accvgpr_read_b32 {vr(L)}, {ar(aL)}
        v_accvgpr_read_b32 {vr(t)}, {ar(aL+1)}
        s_mov_b32 vcc_lo, 0xffff0000
        s_mov_b32 vcc_hi, 0xffff0000
        v_accvgpr_read_b32 {vr(L8)}, {ar(aL8)}
        v_accvgpr_read_b32 {vr(t+1)}, {ar(aL8+1)}
        v_cndmask_b32 {vr(L)}, {vr(L)}, {vr(t)}, vcc
        v_add_f32 {vr(L8)}, {vr(L8)}, {vr(t+1)}
        v_rcp_f32 {vr(t+2)}, {vr(L)}""")
    else:
        p(f"""v_mov_b32 {vr(t)}, {vr(L)}
        v_mov_b32 {vr(t+1)}, {vr(L8)}
        s_nop 1
        v_permlane32_swap_b32 {vr(L)}, {vr(t)}
        v_permlane16_swap_b32 {vr(L8)}, {vr(t+1)}
        v_add_f32 {vr(L)}, {vr(L)}, {vr(t)}
        v_add_f32 {vr(L8)}, {vr(L8)}, {vr(t+1)}
        v_rcp_f32 {vr(t+2)}, {vr(L)}
        v_mov_b32 {vr(t+1)}, {vr(L8)}
        s_nop 1
        v_permlane32_swap_b32 {vr(L8)}, {vr(t+1)}
        v_add_f32 {vr(L8)}, {vr(L8)}, {vr(t+1)}""")
    p(f"""s_lshl_b32 {sT1}, {sW4096}, 1
    s_add_u32 {sT1}, {sT1}, {MRG}
    s_mov_b32 {sT0}, 0x4e800000
    s_mov_b32 {sT2}, 0x30800000
    v_cmp_nge_f32 vcc, {sT0}, {vr(L)}
    v_cmp_nle_f32 {sM}, {sT2}, {vr(L)}
    v_add_u32 {vr(t+3)}, {sT1}, {vr(vLin)}
    s_or_b64 {sM}, vcc, {sM}
    v_cmp_nge_f32 vcc, {sT0}, {vr(L8)}
    s_lshr_b32 {sT1}, {sW4096}, 1
    s_add_u32 {sT1}, {sT1}, {MRG}
    s_or_b64 vcc, vcc, {sM}
    s_cselect_b32 {sT0}, 1, 0
    v_add_u32 {vr(t+4)}, {sT1}, {vr(vLin)}
    v_mov_b32 {vr(t+1)}, {sT0}""")
    for D in range(8):
        p(f"ds_write_b128 {vr(t+3)}, {ar(aO8+4*D,4)} offset:{D*1024}")
    p(f"ds_write_b32 {vr(vL8w)}, {vr(L8)}")
    p(f"ds_write_b32 {vr(vL8w)}, {vr(t+1)} offset:256")
    p(f"s_lshl_b32 {sWQoff}, {sW4096}, 1")
    p(f"s_add_u32 {sWQoff}, {sWQoff}, {sOst}")
    def norm(D):
        o = O + 16 * D
        for j in range(0, 16, 2):
            p(f"v_pk_mul_f32 {vr(o+j,2)}, {vr(o+j,2)}, {vr(t+2,2)} op_sel_hi:[1,0]")
        for jj in range(2):
            d = S + 8 * D + 4 * jj
            for k, src in enumerate((4*jj, 4*jj+2, 8+4*jj, 8+4*jj+2)):
                p(f"v_cvt_pk_bf16_f32 {vr(d+k)}, {vr(o+src)}, {vr(o+src+1)}")
            p(f"buffer_store_dwordx4 {vr(d,4)}, {vr(vOst)}, {sWS}, {sWQoff} offen offset:{D*1024+jj*512} {OST} ;@tag=ost")
    norm(0); norm(1)
    if inst[1] == '0':
        m = newlab()
        p(f"""s_cmp_lg_u32 {sW}, 0
        s_cbranch_scc1 INITE{m}
        s_mov_b32 {sT1}, 0x20000
        INITL{m}:
        v_readfirstlane_b32 {sT0}, {vr(vInit+1)}
        s_nop 0
        s_cmp_lg_u32 {sT0}, 0
        s_cbranch_scc1 INITE{m}
        global_load_dword {vr(vInit+1)}, {vr(vInit)}, {sDBG} sc1 ;@nocount
        s_waitcnt vmcnt(0) ;@nocount
        s_sub_u32 {sT1}, {sT1}, 1
        s_cbranch_scc0 INITL{m}
        INITE{m}:""")
    p.ext(st(True))
    p("s_waitcnt lgkmcnt(0)")
    p("s_barrier")
    M = O
    for v in range(4):
        p(f"ds_read_b128 {vr(M+8*v,4)}, {vr(t+4)} offset:{v*8192}")
        p(f"ds_read_b128 {vr(M+8*v+4,4)}, {vr(t+4)} offset:{v*8192+1024}")
    p(f"ds_read_b128 {vr(P,4)}, {vr(vL8r)}")
    p(f"ds_read_b128 {vr(P+4,4)}, {vr(vL8r)} offset:256")
    norm(2); norm(3)
    p(f"""v_add_f32 {vr(P)}, {vr(P)}, {vr(P+1)}
    v_add_f32 {vr(P+2)}, {vr(P+2)}, {vr(P+3)}
    v_or_b32 {vr(P+4)}, {vr(P+4)}, {vr(P+5)}
    v_add_f32 {vr(P)}, {vr(P)}, {vr(P+2)}
    v_or3_b32 {vr(P+4)}, {vr(P+4)}, {vr(P+6)}, {vr(P+7)}
    v_cmp_nle_f32 vcc, {sT2}, {vr(P)}
    v_cmp_ne_u32 {sM}, 0, {vr(P+4)}
    v_rcp_f32 {vr(P+2)}, {vr(P)}
    s_lshr_b32 {sT1}, {sW4096}, 2
    s_add_u32 {sT1}, {sT1}, {sOst}
    s_or_b64 vcc, vcc, {sM}
    s_cselect_b32 {sT0}, 1, 0
    s_cmp_gt_u32 {sT0}, {sRetry}
    s_cbranch_scc1 SLOW{inst}""")
    for j in range(8):
        p(f"v_add_f32 {vr(M+j)}, {vr(M+j)}, {vr(M+8+j)}")
        p(f"v_add_f32 {vr(M+16+j)}, {vr(M+16+j)}, {vr(M+24+j)}")
    for j in range(8): p(f"v_add_f32 {vr(M+j)}, {vr(M+j)}, {vr(M+16+j)}")
    for j in range(8): p(f"v_mul_f32 {vr(M+j)}, {vr(M+j)}, {vr(P+2)}")
    for j in range(4): p(f"v_cvt_pk_bf16_f32 {vr(M+j)}, {vr(M+2*j)}, {vr(M+2*j+1)}")
    p(f"""s_add_u32 {sT1}, {sT1}, 32768
    buffer_store_dwordx4 {vr(M,4)}, {vr(vLin)}, {sWS}, {sT1} offen {OST} ;@tag=ost
    s_add_u32 {sPair}, {sPair}, 131072
    s_add_u32 {sOst}, {sOst}, {OHEAD}""")
    if nxt != 'A': p.ext(kv_reset())
    else:
        for j in range(32): p(f"v_accvgpr_read_b32 {vr(QR+j)}, {ar(aPark+j)}")
        for j in range(16): p(f"v_accvgpr_mov_b32 {ar(aQ8+j)}, {ar(aPark+32+j)}")
    q = Prog()
    F = O; ln = vr(vLane)
    t0, t1, t2, t3, t4 = [vr(T+i) for i in range(5)]
    q(f"""SLOW{inst}:
    s_waitcnt vmcnt(0) lgkmcnt(0)
    s_barrier
    s_mov_b32 {sRetry}, 1
    v_and_b32 {t0}, 31, {ln}
    v_lshrrev_b32 {t1}, 5, {ln}
    v_lshlrev_b32 {t1}, 4, {t1}
    v_lshl_add_u32 {t0}, {t0}, 8, {t1}
    v_and_b32 {t2}, 15, {ln}
    v_lshrrev_b32 {t1}, 4, {ln}
    v_lshlrev_b32 {t1}, 4, {t1}
    v_lshl_add_u32 {t2}, {t2}, 8, {t1}
    v_mov_b32 {t3}, 0xff800000
    v_mov_b32 {t4}, 0xff800000
    s_mov_b32 {sT0}, {sPair}
    s_mov_b32 {sT2}, 0
    SLOWL{inst}:""")
    for sl in range(8):
        q(f"""s_lshl_b32 {sT1}, {sW}, 1
        s_add_u32 {sT1}, {sT1}, {sl}
        s_and_b32 {sT1}, {sT1}, 7
        s_lshl_b32 {sT1}, {sT1}, 5
        s_add_u32 {sT1}, {sT1}, {sT0}
        buffer_load_dwordx4 {vr(F+4*sl,4)}, {t0}, {sK}, {sT1} offen""")
    q("s_waitcnt vmcnt(0)")
    for sl in range(8):
        q(f"v_mfma_f32_32x32x16_bf16 {vr(S,16)}, {vr(F+4*sl,4)}, {vr(QR+4*sl,4)}, {'0' if sl == 0 else vr(S,16)}")
    q("s_nop 4")
    q(f"s_add_u32 {sT1}, {sT0}, 4096")
    for kt in range(2):
        for sp in range(4):
            q(f"buffer_load_dwordx4 {vr(F+16*kt+4*sp,4)}, {t2}, {sK}, {sT0 if kt == 0 else sT1} offen offset:{sp*64}")
    q("s_waitcnt vmcnt(0)")
    for kt in range(2):
        for sp in range(4):
            q(f"v_mfma_f32_16x16x32_bf16 {vr(S8+4*kt,4)}, {vr(F+16*kt+4*sp,4)}, {ar(aQ8+4*sp,4)}, {'0' if sp == 0 else vr(S8+4*kt,4)}")
    q("s_nop 15")
    for j in range(0, 16, 2): q(f"v_max3_f32 {t3}, {t3}, {vr(S+j)}, {vr(S+j+1)}")
    for j in range(0, 8, 2): q(f"v_max3_f32 {t4}, {t4}, {vr(S8+j)}, {vr(S8+j+1)}")
    q(f"""s_add_u32 {sT0}, {sT0}, 8192
    s_add_u32 {sT2}, {sT2}, 1
    s_cmp_lt_u32 {sT2}, 16
    s_cbranch_scc1 SLOWL{inst}
    v_mov_b32 {t0}, {t3}
    v_mov_b32 {t1}, {t4}
    s_nop 1
    v_permlane32_swap_b32 {t3}, {t0}
    v_permlane16_swap_b32 {t4}, {t1}
    v_max_f32 {t3}, {t3}, {t0}
    v_max_f32 {t4}, {t4}, {t1}
    v_mov_b32 {t1}, {t4}
    s_nop 1
    v_permlane32_swap_b32 {t4}, {t1}
    v_max_f32 {t4}, {t4}, {t1}""")
    for j in range(16): q(f"v_sub_f32 {vr(NEGM+j)}, 0, {t3}")
    for j in range(4): q(f"v_sub_f32 {vr(NEGM8+j)}, 0, {t4}")
    q.ext(kv_reset())
    for g in u_dma(0) + u_dma(1): q.ext(g)
    q(f"""s_waitcnt vmcnt(0)
    s_barrier
    s_branch ATT{inst}""")
    slow_code.extend(q.L)

def p_seg(p, stages, first, nxt, sig, checks):
    aW = S; vO8 = S + 9; B8 = S + 12
    WP = O; NP = 8; LAF = int(OPT.get('laf', 6))
    NS = len(stages); NK = 4 * NS
    ln = vr(vLane); t0, t1 = vr(T), vr(T+1)
    p(f"""v_lshrrev_b32 {t0}, 2, {ln}
    v_mul_u32_u24 {t0}, 288, {t0}
    v_and_b32 {t1}, 3, {ln}
    v_lshl_add_u32 {t0}, {t1}, 3, {t0}
    s_lshl_b32 {sT1}, {sW}, 6
    v_add_u32 {t0}, {sT1}, {t0}
    v_add_u32 {vr(vO8)}, {O8SLOT}, {vr(vLin)}""")
    for i in range(9):
        if i < 3: p(f"v_add_u32 {vr(aW+i)}, {32*i}, {t0}")
        else:
            p(f"""s_cmp_ge_u32 {sW}, {(9 - i + 1) // 2}
            s_cselect_b32 {sT0}, {(-288) & 0xffffffff}, 0
            s_add_u32 {sT0}, {sT0}, {32*i}
            v_add_u32 {vr(aW+i)}, {sT0}, {t0}""")
    p.ext(st(True))
    p("@waitvm wo0 lgkmcnt(0)")
    p("s_barrier")
    p.ext(st(True))
    fin = (nxt == 'F')
    NK1 = NK - 4 if fin else NK
    def freads(F):
        k, i = divmod(F, 9)
        f = WP + 4 * (F % NP)
        off = ((k % 16) % 7) * 9216
        r = [f"ds_read_b64_tr_b16 {vr(f+2*u,2)}, {vr(aW+i)} offset:{off+u*4608}" for u in range(2)]
        if i == 0: r.append(f"ds_read_b128 {vr(B8+4*(k&1),4)}, {vr(vO8)} offset:{(k%16)*1024}")
        return r
    pre = []
    for F in range(LAF): pre += freads(F)
    mf = []; ds = {}; misc = []; ops = []
    first_gap = {}; kstart = {}
    for k in range(NK1):
        kstart[k] = len(mf)
        for i in range(9):
            F = 9 * k + i
            f = WP + 4 * (F % NP)
            first_gap[F] = len(mf)
            for r in ([0, 1, 2] if i < 3 else [0, 1]):
                acc = aPacc + (4 * (2*i + r) if r < 2 else 72 + 4*i)
                c = "0" if (first and k == 0) else ar(acc, 4)
                b = ar(oset(stages, k, fin)+4*r, 4) if r < 2 else vr(B8+4*(k&1), 4)
                mf.append(f"v_mfma_f32_16x16x32_bf16 {ar(acc,4)}, {vr(f,4)}, {b}, {c}")
    kstart[NK1] = len(mf)
    marks = {}; flc = {}
    for n in checks: marks[n], flc[n] = flag_load(sFlG)
    barg = {0: -1}; items = []
    for F in range(LAF, 9 * NK1 + (1 if fin else 0)):
        g = first_gap[F - LAF]
        k, i = divmod(F, 9)
        if i == 0 and k % 4 == 0:
            n = k // 4
            if k == NK1: g = len(mf) - 1
            chkc = flag_check(marks[n], sFlG, *checks[n]) if n in checks else []
            if nxt == 'A' and n == NS - 1: chkc = chkc + gate(OPT.get('g0'))
            tags = f"wo{n}" + (",ost" if (sig and n == 1) else "") + ("".join(f",o{x}" for x in range(NK1, NK)) if k == NK1 else "")
            ds.setdefault(g, []).extend(chkc + [f"@waitvm {tags}", "s_barrier"] + st(True))
            barg[n] = g
            if k == NK1: break
        for x in freads(F): items.append((g + 1 if g in ds else g, g + 2, x))
        if k % 16 in (6, 13): ops.append(dict(text=f"v_add_u32 {vr(aW+i)}, {7*9216}, {vr(aW+i)}", lo=g+3, hi=g+10, deps=[], pri=F))
        if k % 16 == 15 and k + 1 < NK: ops.append(dict(text=f"v_subrev_u32 {vr(aW+i)}, {14*9216}, {vr(aW+i)}", lo=g+3, hi=g+10, deps=[], pri=F))
        if fin and k == NK1 - 1: ops.append(dict(text=f"v_add_u32 {vr(aW+i)}, {12*9216 - 7*9216}, {vr(aW+i)}", lo=g+3, hi=g+10, deps=[], pri=F))
    ds = place_reads(mf, items, ds)
    def units(groups):
        r = []; acc = []
        for g in groups:
            acc += g
            if any('buffer_' in x for x in g): r.append(acc); acc = []
        assert not acc
        return r
    for n in range(NK1 // 4):
        oth = o8_dma(stages[n+1], n + 1) if n + 1 < NS else []
        if n + 2 < NS: oth = oth + wo_dma(stages[n+2], n + 2)
        late = nxt == 'A' and n == NS - 1
        if late: oth = u_dma(0) + u_dma(1)
        oth = units(oth)
        seq = []
        for k in range(4*n, 4*n + 4):
            g = []
            if fin and k >= NK1 - 4:
                j = k - (NK1 - 4)
                if j == 0: g = oloads(stages, k + LAO, fin)
                elif j <= 2: g = oloads(stages, NK1 + 2*j - 2, fin) + oloads(stages, NK1 + 2*j - 1, fin)
            elif k + LAO < NK: g = oloads(stages, k + LAO, fin)
            g = units(g)
            if k % 4 == 1 and (k + 3) // 4 in flc: g = [["\n".join(flc[(k + 3) // 4])]] + g
            j = k - 4*n
            o = oth[(j*len(oth))//4:((j+1)*len(oth))//4] if not late else (oth[((j-1)*len(oth))//3:(j*len(oth))//3] if j else [])
            m = []
            while g or o:
                if g: m.append(g.pop(0))
                if o: m.append(o.pop(0))
            seq.append(m)
            if k + 1 < NK1: ds.setdefault(kstart[k+1] - 1, []).append(f"@waitvm o{k+1}")
        tot = sum(len(m) for m in seq); cntu = 0; ent = []
        lo = kstart[4*n]; span = kstart[4*n + 4] - lo
        for j, m in enumerate(seq):
            for u in m:
                tg = max(lo + 2 + (cntu * span) // tot, kstart[4*n + j] + 1); cntu += 1
                for q_, x in enumerate(u): ent.append((x, max(tg - (len(u) - 1 - q_), lo), tg + 2))
        if sig and n == 0:
            ent.append(("\n".join(signal(sig)), barg[1] + 1, barg[1] + 3)); ent.sort(key=lambda x: x[1])
        misc += ent
    p("@waitvm o0")
    p.ext(st(True))
    p.ext(schedule(pre, mf, ds, misc, ops, group=int(OPT.get('pgrp', 4)), vmsp=int(OPT.get('pvm', 0))))

def f_phase(G):
    p = Prog()
    ln = vr(vLane); t0, t1 = vr(T), vr(T+1)
    units = {g: [3*g + k for k in range(3) if 3*g + k <= 10] for g in range(4)}
    aW = S; vO8 = S + 9; B8 = S + 12; WP = O; NP = 8; LAF = 6
    p(f"FIN{G}:")
    if G == 0: order = [(i, 0, 1) for i in range(3)] + [(i, 1, 0) for i in range(3, 9)] + [(i, 1, 0) for i in range(3)]
    elif G == 3: order = [(i, 1, 0) for i in range(9)] + [(i, 0, 1) for i in range(3)]
    else: order = [(i, 1, 1 if i < 3 else 0) for i in range(9) if i // 3 != G] + [(i, 1, 0) for i in range(3*G, 3*G+3)]
    mf = []; fg = []; rd = []; endof = {}
    for i, a, b in order:
        for ks in range(4):
            f = WP + 4 * (len(fg) % NP)
            fg.append(len(mf))
            rd.append([f"ds_read_b64_tr_b16 {vr(f+2*u,2)}, {vr(aW+i)} offset:{ks*9216+u*4608}" for u in range(2)])
            for r in ([0, 1] if a else []) + ([2] if b else []):
                acc = aPacc + (4 * (2*i + r) if r < 2 else 72 + 4*i)
                bb = ar(aO8 + 8*ks + 4*r, 4) if r < 2 else vr(B8 + 4*ks, 4)
                mf.append(f"v_mfma_f32_16x16x32_bf16 {ar(acc,4)}, {vr(f,4)}, {bb}, {ar(acc,4)}")
                endof[i if r < 2 else (9 if i < 2 else 10)] = len(mf) - 1
    pre = []; items = []
    for F in range(len(fg)):
        b8 = [f"ds_read_b128 {vr(B8+4*F,4)}, {vr(vO8)} offset:{(12+F)*1024}"] if F < 4 else []
        if F < LAF: pre += rd[F] + b8
        else: items += [(fg[F - LAF], fg[F - LAF] + 2, x) for x in rd[F]]
    ds = place_reads(mf, items)
    p(f"""s_lshl_b32 {sT1}, {sBlk}, 3
    s_add_u32 {sT1}, {sT1}, {sB}""")
    p.ext(pre)
    p(f"""s_lshl_b32 {sT1}, {sT1}, 2
    s_add_u32 {sT1}, {sT1}, {sJ}
    s_lshl_b32 {sT1}, {sT1}, 6
    s_add_u32 {sT1}, {sT1}, {sW}
    s_mul_i32 {sOldA}, {sT1}, 3072
    s_add_u32 {sOldA}, {sOldA}, {PART}""")
    dsts = {}
    for d, r in zip([g for g in range(4) if g != G], (sKoff, sVoff, sWQoff)):
        p(f"s_add_u32 {r}, {sOldA}, {(d*16 + G*4) * 3072}"); dsts[d] = r
    ops = []
    sends = sorted([u for u in range(11) if u // 3 != G], key=lambda u: endof[u])
    for tb, u in enumerate(sends):
        b = P + 12 * (tb % 4)
        nreg = 8 if u < 10 else 4
        b0 = len(ops); lo = endof[u] + 4
        prev = [b0 - 1] if tb else []
        for j in range(nreg): ops.append(dict(text=f"v_accvgpr_read_b32 {vr(b+j)}, {ar(aPacc+8*u+j)}", lo=lo, hi=10**6, deps=prev, pri=len(ops)))
        for j in range(nreg // 2): ops.append(dict(text=f"v_cvt_pk_bf16_f32 {vr(b+8+j)}, {vr(b+2*j)}, {vr(b+2*j+1)}", lo=lo, hi=10**6, deps=[b0+2*j, b0+2*j+1], pri=len(ops)))
        ops.append(dict(text=f"buffer_store_dwordx4 {vr(b+8,4)}, {vr(vLin)}, {sWS}, {dsts[u//3]} offen offset:{(u%3)*1024} sc1", lo=lo, hi=10**6,
                        deps=list(range(b0 + nreg, b0 + nreg + nreg // 2)), pri=len(ops)))
    W, left = schedule([], mf, ds, [], ops, group=4, leftover=True)
    p.ext(W)
    p.ext(st(True))
    if len(left) < 8: p("s_nop 7")
    p.ext(left)
    AC = O + 40; LD = O; vOut = S
    for k, u in enumerate(units[G]):
        for j in range(8 if u < 10 else 4): p(f"v_accvgpr_read_b32 {vr(AC+8*k+j)}, {ar(aPacc+8*u+j)}")
    p(f"""v_and_b32 {t0}, 15, {ln}
    v_mul_u32_u24 {t0}, 2304, {t0}
    v_lshrrev_b32 {t1}, 4, {ln}
    v_lshl_add_u32 {vr(vOut)}, {t1}, 3, {t0}
    s_mul_i32 {sT2}, {sB}, {144*2304}
    s_mul_i32 {sT1}, {sJ}, 288
    s_add_u32 {sT2}, {sT2}, {sT1}
    s_mul_i32 {sT1}, {sBlk}, 1152
    s_add_u32 {sT2}, {sT2}, {sT1}
    s_lshl_b32 {sT1}, {sW}, 6
    s_add_u32 {sT2}, {sT2}, {sT1}""")
    so = [sKoff, sVoff, sWQoff, sXoff, sStage, sXbase]
    tiles = []
    for k, u in enumerate(units[G]):
        for r in range(2 if u < 10 else 1):
            tiles.append((AC + 8*k + 4*r, so[len(tiles)], u if u < 9 else (u - 9) * 2 + r, r if u < 9 else None))
    if G < 3: p(f"s_mul_i32 {sT1}, {sW}, {32*2304}\ns_add_u32 {sT2}, {sT2}, {sT1}")
    for reg, s_, i, r in tiles:
        row = (16 * r if r is not None else 128) * 2304
        if i >= 3:
            p(f"""s_cmp_ge_u32 {sW}, {(9 - i + 1) // 2}
            s_cselect_b32 {sT0}, {(-288) & 0xffffffff}, 0
            s_add_u32 {sT0}, {sT0}, {32*i + row}
            s_add_u32 {s_}, {sT2}, {sT0}""")
        else: p(f"s_add_u32 {s_}, {sT2}, {32*i + row}")
        if r is None and i == 2:
            p(f"s_cmp_eq_u32 {sW}, 3\ns_cselect_b32 {s_}, {s_}, 0x40000000")
    p(f"s_add_u32 {sOldA}, {sOldA}, {G*16*3072}")
    p.ext(st(True))
    p("s_waitcnt vmcnt(0)")
    p.ext(st(True))
    m = newlab()
    oth = [T + 2 + g for g in range(4) if g != G]
    p(f"""s_lshl_b32 {sT0}, {sW}, 4
    s_add_u32 {sFlS}, {sFlS}, {sT0}
    s_add_u32 {sM0}, {sFlS}, {4*G}
    v_mov_b32 {vr(T+7)}, 1
    buffer_load_dwordx4 {vr(T+2,4)}, {vr(vZero)}, {sWS}, {sFlS} offen sc1 ;@nocount
    s_mov_b64 exec, 1
    buffer_store_dword {vr(T+7)}, {vr(vZero)}, {sWS}, {sM0} offen sc1 ;@nocount
    s_mov_b64 exec, -1
    s_mov_b32 {sT3}, 0x20000
    s_waitcnt vmcnt(1) ;@nocount
    CL{m}:
    v_min3_u32 {vr(T+6)}, {vr(oth[0])}, {vr(oth[1])}, {vr(oth[2])}
    s_nop 0
    v_readfirstlane_b32 {sM0}, {vr(T+6)}
    s_nop 0
    s_cmp_ge_u32 {sM0}, 1
    s_cbranch_scc1 CE{m}
    buffer_load_dwordx4 {vr(T+2,4)}, {vr(vZero)}, {sWS}, {sFlS} offen sc1 ;@nocount
    s_waitcnt vmcnt(0) ;@nocount
    s_sub_u32 {sT3}, {sT3}, 1
    s_cbranch_scc0 CL{m}
    CE{m}:""")
    p.ext(st(True))
    srcs = [(G + d) % 4 for d in range(1, 4)]
    for k, u in enumerate(units[G]):
        for d, Gs in enumerate(srcs):
            p(f"s_add_u32 {sT0}, {sOldA}, {Gs*4*3072}")
            p(f"buffer_load_dwordx4 {vr(LD+12*k+4*d,4)}, {vr(vLin)}, {sWS}, {sT0} offen offset:{k*1024} sc1")
    p(f"s_mov_b32 {sT0}, 0xffff0000")
    ti = 0
    for k, u in enumerate(units[G]):
        for d in range(3):
            for j in range(4 if u < 10 else 2):
                x = LD + 12*k + 4*d + j
                p(f"v_lshlrev_b32 {t0}, 16, {vr(x)}")
                p(f"v_and_b32 {t1}, {sT0}, {vr(x)}")
                p(f"v_add_f32 {vr(AC+8*k+2*j)}, {vr(AC+8*k+2*j)}, {t0}")
                p(f"v_add_f32 {vr(AC+8*k+2*j+1)}, {vr(AC+8*k+2*j+1)}, {t1}")
        for r in range(2 if u < 10 else 1):
            reg, s_, _, _ = tiles[ti]; ti += 1
            p(f"v_cvt_pk_bf16_f32 {vr(reg)}, {vr(reg)}, {vr(reg+1)}")
            p(f"v_cvt_pk_bf16_f32 {vr(reg+1)}, {vr(reg+2)}, {vr(reg+3)}")
            p(f"buffer_store_dwordx2 {vr(reg,2)}, {vr(vOut)}, {sOUT}, {s_} offen {OPT.get('outfl', '')}")
    if STAMP:
        e = STB + 2 * (NST - 2)
        p(f"""s_waitcnt vmcnt(0)
        s_memtime s[{e}:{e+1}]
        s_memrealtime s[{e+2}:{e+3}]
        s_waitcnt lgkmcnt(0)
        s_lshl_b32 s3, s2, 2
        s_add_u32 s3, s3, {sW}
        s_lshl_b32 s3, s3, 7
        s_add_u32 s3, s3, {WSSIZE}
        s_mov_b32 s26, {WSSIZE + 262144}
        s_mov_b64 exec, 1""")
        if "gdelay" in OPT:
            n = newlab()
            p(f"""s_cmp_lg_u32 {sW}, 0
            s_cbranch_scc1 NOD{n}
            s_not_b32 s5, s96
            v_mov_b32 v0, s5
            v_mov_b32 v1, s96
            v_mov_b32 v2, s{e+2}
            v_mov_b32 v3, 1
            global_atomic_umax {vr(vZero)}, v0, {sDBG} offset:160 sc1
            global_atomic_umax {vr(vZero)}, v1, {sDBG} offset:164 sc1
            global_atomic_umax {vr(vZero)}, v2, {sDBG} offset:168 sc1
            s_waitcnt vmcnt(0)
            global_atomic_add {vr(vZero)}, v3, {sDBG} offset:172 sc1
            s_cmp_lg_u32 s2, 0
            s_cbranch_scc1 NOD{n}
            s_mov_b32 s7, 0x40000
            GL{n}:
            global_load_dwordx4 v[4:7], {vr(vZero)}, {sDBG} offset:160 sc1
            s_waitcnt vmcnt(0)
            v_readfirstlane_b32 s5, v7
            s_nop 1
            s_cmp_ge_u32 s5, 256
            s_cbranch_scc1 GE{n}
            s_sleep 8
            s_sub_u32 s7, s7, 1
            s_cbranch_scc0 GL{n}
            GE{n}:
            v_readfirstlane_b32 s5, v4
            v_readfirstlane_b32 s6, v{5 if OPT["gdelay"][0] == "s" else 6}
            s_nop 1
            s_not_b32 s5, s5
            s_sub_u32 s5, s6, s5
            s_mul_i32 s5, s5, {OPT["gdelay"][1:]}
            s_memrealtime s[6:7]
            s_waitcnt lgkmcnt(0)
            s_add_u32 s5, s5, s6
            DL{n}:
            s_memrealtime s[6:7]
            s_waitcnt lgkmcnt(0)
            s_sub_u32 s6, s6, s5
            s_cmp_lt_i32 s6, 0
            s_cbranch_scc1 DL{n}
            NOD{n}:
            s_endpgm""")
        if "delay" in OPT:
            a, b, wg = [int(x) for x in OPT["delay"].split(":")]
            n = newlab()
            p(f"""s_cmp_lg_u32 s2, {wg}
            s_cbranch_scc1 NOD{n}
            s_sub_u32 s5, s{STB+2*b}, s{STB+2*a}
            s_lshl_b32 s5, s5, 3
            s_add_u32 s5, s5, s{e+2}
            DL{n}:
            s_memrealtime s[6:7]
            s_waitcnt lgkmcnt(0)
            s_sub_u32 s6, s6, s5
            s_cmp_lt_i32 s6, 0
            s_cbranch_scc1 DL{n}
            NOD{n}:
            s_endpgm""")
        if "dbgst" in sys.argv:
            n = newlab()
            p(f"""v_mov_b32 v0, s{e+2}
            s_not_b32 s5, s{STB+2}
            v_mov_b32 v1, s5
            global_atomic_umax {vr(vZero)}, v0, {sDBG} sc1
            global_atomic_umax {vr(vZero)}, v1, {sDBG} offset:4 sc1
            s_lshl_b32 s5, s2, 2
            s_add_u32 s5, s5, {sW}
            s_and_b32 s6, s5, {0xffffffff - 256}
            s_cmp_lg_u32 s6, 0
            s_cbranch_scc1 NOD{n}
            s_lshr_b32 s5, s5, 8
            s_mul_i32 s5, s5, 28
            s_add_u32 s5, s5, 8
            v_mov_b32 v9, s5""")
            for k in range(7):
                src = STB + 2*(2+k) if k < 6 else e
                p(f"s_sub_u32 s6, s{src}, s{STB}\nv_mov_b32 v0, s6\nglobal_store_dword v9, v0, {sDBG} offset:{4*k}")
            p(f"NOD{n}:")
        for k in range(NST): p(f"v_mov_b32 v{k}, s{STB+2*k}")
        for k in range(0, 20, 4): p(f"buffer_store_dwordx4 v[{k}:{k+3}], {vr(vZero)}, {sWS}, s3 offen offset:{4*k}")
    p("s_endpgm")
    L_ = merge_waits(auto_lgkm(auto_vm(fix_m0(p.L))))
    return L_, len(check_hazards(L_))

def prologue(p):
    p(f"""s_cmp_ge_u32 s2, 256
    s_cbranch_scc1 K_END
    {"s_memrealtime s[96:97]" if STAMP else ""}
    s_load_dwordx8 s[68:75], s[0:1], 0
    s_load_dwordx8 s[76:83], s[0:1], 40
    s_load_dwordx2 s[84:85], s[0:1], 32
    s_load_dwordx2 s[86:87], s[0:1], 72
    s_load_dwordx2 s[32:33], s[0:1], 80
    s_load_dwordx2 s[36:37], s[0:1], 88
    s_load_dwordx2 s[24:25], s[0:1], 96
    v_and_b32 {vr(vLane)}, 63, v0
    v_lshrrev_b32 v1, 6, v0
    s_and_b32 s3, s2, 7
    v_readfirstlane_b32 {sW}, v1
    s_lshr_b32 s4, s2, 3
    s_lshr_b32 {sBlk}, s3, 2
    s_and_b32 {sG}, s3, 3
    s_and_b32 {sB}, s4, 7
    s_lshr_b32 {sJ}, s4, 3
    s_lshl_b32 s5, {sJ}, 1
    s_lshl_b32 s3, {sG}, 3
    s_add_u32 s3, s3, s5
    s_add_u32 {sStage0}, s5, {sB}
    s_cmp_ge_u32 {sStage0}, 9
    s_cselect_b32 s5, 9, 0
    s_sub_u32 {sStage0}, {sStage0}, s5
    s_mov_b32 {sStage}, {sStage0}
    s_lshl_b32 {sW4096}, {sW}, 12
    s_mul_i32 {sXm0}, {sW}, 5120
    s_mul_i32 {sXbase}, {sB}, 165888
    s_and_b32 s5, {sJ}, 1
    s_add_u32 s5, s5, s3
    s_lshl_b32 {sWQbase}, s5, 8
    s_lshl_b32 s5, {sB}, 5
    s_add_u32 s5, s5, s3
    s_lshl_b32 {sPair}, s5, 17
    s_lshl_b32 s6, {sBlk}, 8
    s_add_u32 s5, s5, s6
    s_mul_i32 {sOst}, s5, {OHEAD}
    s_mov_b32 s10, 1327104
    s_mov_b32 s11, 0x20000
    s_mov_b32 s14, 33554432
    s_mov_b32 s15, 0x20000
    s_mov_b32 s18, 33554432
    s_mov_b32 s19, 0x20000
    s_mov_b32 s22, 4718592
    s_mov_b32 s23, 0x20000
    s_mov_b32 s26, {WSSIZE}
    s_mov_b32 s27, 0x20000
    s_mov_b32 s30, 4718592
    s_mov_b32 s31, 0x20000
    s_mov_b32 s34, 2654208
    s_mov_b32 s35, 0x20000""")
    ln = vr(vLane)
    t0, t1, t2, t3, t4, t5 = [vr(T+i) for i in range(6)]
    l16, l4, r32, hh, cc, rr = [vr(S8+i) for i in range(6)]
    g1, l7, l3 = [vr(S8+6+i) for i in range(3)]
    p(f"""v_and_b32 {l16}, 15, {ln}
    v_lshrrev_b32 {l4}, 4, {ln}
    v_and_b32 {l7}, 7, {ln}
    v_lshrrev_b32 {l3}, 3, {ln}
    v_lshlrev_b32 {t0}, 2, {l4}
    v_xor_b32 {t0}, {t0}, {l16}
    v_lshlrev_b32 {t0}, 4, {t0}
    s_lshl_b32 s3, {sW}, 4
    v_add_u32 {t1}, s3, {l4}
    v_lshl_add_u32 {vr(dWQ)}, {t1}, 13, {t0}""")
    p(f"v_add_u32 {vr(dWQ+1)}, {32768-1024}, {vr(dWQ)}")
    p(f"v_xor_b32 {t0}, 32, {vr(dWQ)}")
    for i in range(2, 4): p(f"v_add_u32 {vr(dWQ+i)}, {i*(32768-1024)}, {t0}")
    p(f"s_mul_i32 s3, {sW}, 5")
    p(f"v_mul_u32_u24 {t1}, 1152, {l3}")
    for i in range(5):
        p(f"""s_add_u32 s4, s3, {i}
        s_lshl_b32 s5, s4, 2
        s_mul_i32 s4, s4, 9216
        v_add_u32 {t0}, s5, {l4}
        v_and_b32 {t0}, 7, {t0}
        v_xor_b32 {t0}, {t0}, {l7}
        v_lshlrev_b32 {t0}, 4, {t0}
        s_sub_u32 s4, s4, {i*1024 if i < 4 else 0}
        v_add3_u32 {vr(dX+i)}, {t0}, {t1}, s4""")
    p(f"""s_cmp_eq_u32 {sW}, 3
    s_cselect_b32 s4, 0x40000000, 0
    v_add_u32 {vr(dX+3)}, s4, {vr(dX+3)}
    v_add_u32 {vr(dX+4)}, s4, {vr(dX+4)}""")
    p(f"""s_lshl_b32 s6, {sBlk}, 3
    s_add_u32 s6, s6, {sB}
    s_lshl_b32 s3, s6, 10
    s_add_u32 s3, s3, {FLAGS}
    s_lshl_b32 s5, {sG}, 7
    s_add_u32 {sFlG}, s3, s5
    s_lshl_b32 s5, {sJ}, 7
    s_add_u32 {sFlS}, s3, s5
    s_add_u32 {sFlS}, {sFlS}, 512
    v_mov_b32 {vr(vZero)}, 0
    v_lshlrev_b32 {vr(vLin)}, 4, {ln}
    s_lshl_b32 s5, s6, 2
    s_add_u32 s5, s5, 64
    v_mov_b32 {vr(vInit)}, s5
    s_waitcnt lgkmcnt(0)
    s_cmp_eq_u32 {sBlk}, 0
    s_cselect_b64 s[8:9], s[68:69], s[76:77]
    s_cselect_b64 s[12:13], s[70:71], s[78:79]
    s_cselect_b64 s[16:17], s[72:73], s[80:81]
    s_cselect_b64 s[20:21], s[74:75], s[82:83]
    s_cselect_b64 s[28:29], s[84:85], s[86:87]""")
    if STAMP: p(f"s_memtime s[{STB}:{STB+1}]\ns_memrealtime s[{STB+2}:{STB+3}]")
    p(f"""s_lshl_b32 s5, {sG}, 2
    s_add_u32 s5, s5, {sJ}
    s_lshl_b32 s5, s5, 2
    s_add_u32 s5, s5, {sW}
    s_cmp_lg_u32 s5, 3
    s_cbranch_scc1 NOINIT
    v_mov_b32 v10, 0
    v_mov_b32 v11, 0
    v_mov_b32 v12, 0
    v_mov_b32 v13, 0
    buffer_store_dwordx4 v[10:13], {vr(vLin)}, {sWS}, s3 offen sc1 ;@nocount
    NOINIT:""")
    for g in q_dma(0, "q0"): p.ext(g)
    p(f"""v_and_b32 {r32}, 31, {ln}
    v_lshrrev_b32 {hh}, 5, {ln}
    v_and_b32 {cc}, 3, {ln}
    v_bfe_u32 {rr}, {ln}, 2, 2
    v_and_b32 {g1}, 1, {l4}
    v_lshl_add_u32 {t0}, {l4}, 3, {rr}
    v_and_b32 {t1}, 1, {cc}
    v_lshlrev_b32 {t1}, 3, {t1}
    v_lshl_add_u32 {t3}, {t0}, 8, {t1}
    v_add_u32 {t3}, {WBASE}, {t3}
    v_lshlrev_b32 {t0}, 2, {rr}
    v_lshl_add_u32 {t0}, {g1}, 1, {t0}
    v_lshrrev_b32 {t1}, 1, {cc}
    v_xor_b32 {t2}, {t0}, {t1}
    s_lshl_b32 s5, {sW}, 2""")
    for D in range(8):
        p(f"""s_add_u32 s3, s5, {2*D}
        s_and_b32 s3, s3, 15
        v_xor_b32 {t0}, s3, {t2}
        v_lshl_add_u32 {vr(aWQ+D)}, {t0}, 4, {t3}""")
    p(f"""v_lshrrev_b32 {t1}, 1, {l16}
    v_lshlrev_b32 {t3}, 7, {l16}
    v_add_u32 {t3}, {XBASE}, {t3}""")
    for s in range(2):
        p(f"""v_add_u32 {t0}, {4*s}, {l4}
        v_xor_b32 {t0}, {t0}, {t1}
        v_lshl_add_u32 {t0}, {t0}, 4, {t3}
        v_add_u32 {vr(aX+s)}, {sW4096}, {t0}
        v_add_u32 {vr(aX8+s)}, {128*128}, {t0}""")
    for i in range(4):
        p(f"""v_add_u32 {t0}, {4*i}, {l4}
        v_xor_b32 {t0}, {t0}, {l16}
        v_lshlrev_b32 {t0}, 4, {t0}
        v_lshl_add_u32 {t0}, {l4}, 8, {t0}
        v_add_u32 {vr(dK+i)}, {sW4096}, {t0}""")
    p(f"""v_lshlrev_b32 {t0}, 2, {l4}
    v_xor_b32 {t0}, {t0}, {l16}
    v_lshlrev_b32 {t0}, 4, {t0}
    v_lshl_add_u32 {t0}, {l4}, 8, {t0}
    v_add_u32 {vr(dV)}, {sW4096}, {t0}
    v_xor_b32 {vr(dV+1)}, 32, {vr(dV)}
    v_xor_b32 {t0}, {g1}, {hh}
    v_lshlrev_b32 {t0}, 5, {t0}
    v_lshl_add_u32 {t2}, {cc}, 3, {t0}
    v_lshl_add_u32 {t0}, {hh}, 2, {rr}
    v_lshl_add_u32 {t3}, {t0}, 8, {t2}
    v_add_u32 {t3}, 65536, {t3}""")
    for D in range(4):
        p(f"""v_xor_b32 {t0}, {D}, {rr}
        v_lshl_add_u32 {vr(aV+D)}, {t0}, 6, {t3}""")
    p(f"v_lshlrev_b32 {t3}, 8, {r32}")
    for sl in range(8):
        p(f"""s_lshl_b32 s3, {sW}, 1
        s_add_u32 s3, s3, {sl}
        s_and_b32 s3, s3, 7
        s_lshl_b32 s3, s3, 1
        v_add_u32 {t0}, s3, {hh}
        v_xor_b32 {t0}, {t0}, {l16}
        v_lshl_add_u32 {vr(aK+sl)}, {t0}, 4, {t3}""")
    p(f"""s_lshl_b32 s3, {sW}, 13
    v_lshlrev_b32 {t3}, 8, {l16}
    v_add_u32 {t3}, s3, {t3}""")
    for sp in range(4):
        p(f"""v_add_u32 {t0}, {4*sp}, {l4}
        v_xor_b32 {t0}, {t0}, {l16}
        v_lshl_add_u32 {vr(aK8+sp)}, {t0}, 4, {t3}""")
    p(f"""v_lshl_add_u32 {t0}, {l4}, 2, {rr}
    v_and_b32 {t1}, 1, {cc}
    v_lshlrev_b32 {t1}, 3, {t1}
    v_lshl_add_u32 {t3}, {t0}, 8, {t1}
    s_add_u32 s3, s3, 65536
    v_add_u32 {t3}, s3, {t3}
    v_lshlrev_b32 {t0}, 2, {rr}
    v_lshl_add_u32 {t0}, {g1}, 1, {t0}
    v_lshrrev_b32 {t1}, 1, {cc}
    v_xor_b32 {t2}, {t0}, {t1}""")
    for D in range(8):
        p(f"""v_xor_b32 {t0}, {2*D}, {t2}
        v_lshl_add_u32 {vr(aV8+D)}, {t0}, 4, {t3}""")
    p(f"""v_lshl_add_u32 {t0}, {hh}, 4, {l16}
    s_lshl_b32 s3, {sW}, 10
    s_add_u32 s3, s3, {Q8BUF}
    v_lshl_add_u32 {vr(vQ8w)}, {t0}, 4, s3
    v_lshl_add_u32 {vr(vQ8w)}, {g1}, 3, {vr(vQ8w)}
    v_lshlrev_b32 {t0}, 4, {l16}
    v_lshl_add_u32 {t1}, {g1}, 12, {t0}
    v_lshl_add_u32 {vr(vOst)}, {hh}, 8, {t1}
    v_add_u32 {vr(vL8r)}, {L8BUF}, {t0}
    s_lshl_b32 s3, {sW}, 2
    v_add_u32 {vr(vL8w)}, s3, {vr(vL8r)}
    s_mul_i32 s3, {sW}, {32*1152}
    s_movk_i32 s7, 3641""")
    for i in range(9):
        p(f"""v_add_u32 {t0}, {64*i}, {ln}
        v_mul_u32_u24 {t1}, s7, {t0}
        v_lshrrev_b32 {t1}, 16, {t1}
        v_mul_u32_u24 {t2}, {1152-288}, {t1}
        v_lshl_add_u32 {t0}, {t0}, 4, {t2}
        s_sub_u32 s5, s3, {(i%4)*1024}
        v_add_u32 {vr(dWO+i)}, s5, {t0}""")
    p(f"""v_xor_b32 {t0}, {g1}, {ln}
    v_and_b32 {t0}, 1, {t0}
    v_xor_b32 {t0}, 1, {t0}
    v_mul_u32_u24 {t0}, 0x3f80, {t0}
    v_lshl_add_u32 {t0}, {t0}, 16, {t0}""")
    for j in range(4): p(f"v_accvgpr_write_b32 {ar(aOnes+j)}, {t0}")
    p(f"""s_mul_i32 {sWOm0}, {sW}, 9216
    s_mul_i32 {sWObase}, {sG}, {8*WHEAD}
    s_mul_i32 s3, {sJ}, 288
    s_add_u32 {sWObase}, {sWObase}, s3
    s_and_b32 {sRb}, {sB}, 1
    s_lshr_b32 {sRj}, {sJ}, 1
    s_lshl_b32 s3, {sBlk}, 3
    s_add_u32 s3, s3, {sB}
    s_lshl_b32 s3, s3, 2
    s_add_u32 s3, s3, {sG}
    s_mul_i32 {sObase}, s3, {8*OHEAD}
    s_mov_b32 {sScale}, 0x3e0293ee""")
    for c, r in (('o', sObase), ('w', sWObase), ('s', sOst), ('k', sPair)):
        if c in OPT.get('nop', ''): p(f"s_add_u32 {r}, {r}, 0x40000000")
    p.ext(kv_reset())
    for g in q_dma(1, "q1"): p.ext(g)
    if OPT.get("cw", "1") == "1":
        p(f"""s_getpc_b64 {sM}
        CODE0:
        s_lshr_b32 s3, s2, 3
        s_lshl_b32 s3, s3, 2
        s_add_u32 s3, s3, {sW}
        s_mul_i32 s3, s3, 9
        v_add_u32 {t0}, s3, {ln}
        v_lshlrev_b32 {t0}, 7, {t0}
        v_min_u32 {t0}, CODE1-CODE0-4, {t0}
        s_mov_b64 exec, 0x1ff
        global_load_dword {vr(255)}, {t0}, {sM} ;@dummy
        s_mov_b64 exec, -1""")
    return []

def warm_groups(half=None):
    ln = vr(vLane); a0, a1 = vr(T), vr(T+1)
    return [[f"s_lshl_b32 {sT0}, {sG}, 3", f"s_add_u32 {sT0}, {sT0}, {sB}"], [f"s_lshl_b32 {sT0}, {sT0}, 2", f"s_add_u32 {sT0}, {sT0}, {sJ}"] + ([f"s_sub_u32 {sT0}, {sT0}, 1"] if half == 0 else []),
            [f"s_lshl_b32 {sT0}, {sT0}, 2", f"s_add_u32 {sT0}, {sT0}, {sW}"], [f"s_mul_i32 {sT0}, {sT0}, 9216", f"v_lshlrev_b32 {a0}, 7, {ln}"],
            [f"v_and_b32 {a1}, 0x3ff, {a0}"],
            [f"buffer_load_dword {vr(255)}, {a0}, {sWO}, {sT0} offen ;@dummy", f"s_add_u32 {sT0}, {sT0}, 8192"],
            [f"buffer_load_dword {vr(255)}, {a1}, {sWO}, {sT0} offen ;@dummy"]]
def touch_groups():
    return [[f"s_mul_i32 {sT0}, {sB}, {144*2304}", f"buffer_load_dword {vr(255)}, {vr(vZero)}, {sOUT}, {sT0} offen ;@dummy"],
            [f"buffer_load_dword {vr(255)}, {vr(vZero)}, {sWS}, {sOst} offen ;@dummy"],
            [f"s_lshl_b32 {sT0}, {sBlk}, 3", f"s_add_u32 {sT0}, {sT0}, {sB}"], [f"s_mul_i32 {sT0}, {sT0}, {4*64*3072}", f"s_add_u32 {sT0}, {sT0}, {PART}"],
            [f"buffer_load_dword {vr(255)}, {vr(vZero)}, {sWS}, {sT0} offen ;@dummy"]]

def program(pro, fill, sg):
    p = Prog(); p.L = list(pro)
    n0 = len(p.L)
    nstamp[0] = 2
    def ph(name):
        cur[0] = name; p.ext(st(True))
    def end(): p.ext(st()); p.ext(st(True))
    ex = {}
    if 'a' in OPT["warm"]: ex = {1: warm_groups(), 3: touch_groups()}
    if 't' in OPT["warm"]: ex = {3: touch_groups()}
    if 'l' in OPT["warm"]: ex = {3: touch_groups()} if sg == 0 else {1: warm_groups(0), 3: touch_groups(), 5: warm_groups(1)}
    if sg == 0:
        allp = [(0,0,0,sRb), (0,0,1,sRb), (1,0,0,sRb), (1,0,1,sRb), (1,1,0,sRb), (1,1,1,sRb), (0,1,0,sRj), (0,1,1,sRj)]
        m = int(OPT["m"])
        Pa, Pb = allp[:m], allp[m:]
        ph("Q0"); q_phase(p, False, 'A', 0, 256, True, fillers=fill); end()
        ph("A0"); a_phase(p, "00", 'Q', 'Q', 0, extra=ex); end()
        ph("Q1"); q_phase(p, False, 'P', 1, 0, False, Pa, (0, 1)); end()
        ph("P0"); p_seg(p, Pa, True, 'A', 0, {1: (1, 1)} if m == 4 else {}); end()
        if m == 4:
            ph("A1"); a_phase(p, "01", 'P', 'P', 0, Pb, (1, 2)); end()
            ph("P1"); p_seg(p, Pb, False, 'F', 2, {2: (0, 2)}); end()
        else:
            ph("A1"); a_phase(p, "01", 'P2', 'P', 0, Pb, (1, 1)); end()
            ph("P1"); p_seg(p, Pb, False, 'F', 2, {1: (1, 2), 4: (0, 2)}); end()
    else:
        Pa = [(4,0,0,sB), (4,0,1,sB), (4,0,2,sB), (4,0,3,sB), (1,1,0,sRj), (1,1,1,sRj), (0,1,0,sRb), (0,1,1,sRb)]
        ph("Q0"); q_phase(p, True, 'Q', 0, -256, True, fillers=fill); end()
        ph("Q1"); q_phase(p, False, 'A', 0, 0, False); end()
        ph("A0"); a_phase(p, "10", 'Q', 'A', 0, extra=ex); end()
        ph("A1"); a_phase(p, "11", 'A', 'P', 1, Pa, (None, 1)); end()
        ph("P0"); p_seg(p, Pa, True, 'F', 2, {4: (1, 2), 5: (0, 2)}); end()
        p.ext(st())
    p(f"""s_cmp_eq_u32 {sG}, 0
    s_cbranch_scc1 FIN0
    s_cmp_eq_u32 {sG}, 1
    s_cbranch_scc1 FIN1
    s_cmp_eq_u32 {sG}, 2
    s_cbranch_scc1 FIN2
    s_branch FIN3""")
    mark = "BODY_MARK:"
    L_ = p.L[:n0] + [mark] + p.L[n0:]
    L_ = merge_waits(auto_lgkm(auto_vm(fix_m0(L_))))
    bad = check_hazards(L_)
    k = L_.index(mark)
    return L_[:k], L_[k+1:], len(bad)

def main():
    pro = Prog(); fill = [x.strip() for x in prologue(pro)]
    h0, b0, n0 = program(pro.L, fill, 0)
    h1, b1, n1 = program(pro.L, fill, 1)
    assert h0 == h1
    slow = auto_lgkm(fix_m0(slow_code))
    n2 = len(check_hazards(slow))
    fin = []
    cur[0] = "F0"
    for G in range(4):
        nstamp[0] = 2 if OPT["smode"] == "F0" else 8
        if OPT["smode"] not in ("", "F0"): nstamp[0] = 99
        f, n = f_phase(G); fin += f; n2 += n
    body = h0 + [f"s_bitcmp1_b32 {sJ}, 0", "s_cbranch_scc1 PROG1J", "s_branch PROG0", "PROG1J:", "s_branch PROG1",
                 "K_END:", "s_endpgm", "PROG0:"] + b0 + slow[:len(slow)//2] + fin + slow[len(slow)//2:] + ["PROG1:"] + b1 + ["CODE1:"]
    body = strip(body)
    kn = NAME + "_kernel"
    hdr = open('cdna_kernels/' + NAME + '.s.ref').read().split('; Override launch')[0]
    s = hdr + "; @launch grid=(256,1,1) block=(256,1,1) lds=163840\n"
    s += f'.amdgcn_target "amdgcn-amd-amdhsa--gfx950"\n.text\n.globl {kn}\n.p2align 8\n.type {kn},@function\n{kn}:\n' + "\n".join(body) + "\n"
    s += f""".section .rodata,"a"
.p2align 6
.amdhsa_kernel {kn}
  .amdhsa_next_free_vgpr {NV + NA}
  .amdhsa_next_free_sgpr 102
  .amdhsa_accum_offset {NV}
  .amdhsa_group_segment_fixed_size 0
  .amdhsa_kernarg_size 104
  .amdhsa_user_sgpr_count 2
  .amdhsa_user_sgpr_kernarg_segment_ptr 1
  .amdhsa_system_sgpr_workgroup_id_x 1
.end_amdhsa_kernel
"""
    fn = OPT.get("out", "cdna_kernels/" + NAME + ".s")
    open(fn, "w").write(s)
    print("written", fn, "lines", len(body), "bytes", len(s), "hazards:", n0 + n1 + n2)
main()
```
